```python
import torch

def _softmax(x, axis=-1):
    return torch.softmax(x, dim=axis)
def _gelu(x):
    return torch.nn.functional.gelu(x, approximate="tanh")
def _silu(x):
    return torch.nn.functional.silu(x)
def _sigmoid(x):
    return torch.sigmoid(x)
def _layernorm(x, axis=-1, eps=1e-5):
    m = x.mean(dim=axis, keepdim=True)
    v = x.var(dim=axis, keepdim=True, unbiased=False)
    return (x - m) / torch.sqrt(v + eps)
def _scatter_add(tgt, idx, src, axis=0):
    return tgt.clone().index_add_(axis, idx, src)
def _segment_sum(src, seg, n):
    out = torch.zeros((n,) + src.shape[1:], dtype=src.dtype)
    return out.index_add_(0, seg, src)
def _pad(x, pw):
    flat = tuple(v for pair in reversed(pw) for v in pair)
    return torch.nn.functional.pad(x, flat)

kernel_name = 'sequential_preLN__spectral_gfnet__dense_activation_squared_relu__prompt'

def setup_inputs():

    _w = (lambda a: (lambda t: t.to(torch.bfloat16) if t.is_floating_point() else t)(torch.as_tensor(a)))
    def _A_setup():
        B, S, D = 1, 2048, 640
        Df = D // 2 + 1
        return {
            "x": _w((lambda *s: torch.randn(*s, dtype=torch.bfloat16) * 0.05)(B, S, D)),
            "w_r": _w((lambda *s: torch.randn(*s, dtype=torch.bfloat16) * 0.4)(S, Df) * 0.02),
            "w_i": _w((lambda *s: torch.randn(*s, dtype=torch.bfloat16) * 0.4)(S, Df) * 0.02),
        }
    _A_in = _A_setup()

    def _B_setup():
        B, S, D, F = 1, 2048, 640, 1536
        return {
            "x": _w((lambda *s: torch.randn(*s, dtype=torch.bfloat16) * 0.05)(B, S, D)),
            "w1": _w((lambda *s: torch.randn(*s, dtype=torch.bfloat16) * 0.05)(D, F)),
            "b1": _w((lambda *s: torch.randn(*s, dtype=torch.bfloat16) * 0.2)(F)),
            "w2": _w((lambda *s: torch.randn(*s, dtype=torch.bfloat16) * 0.05)(F, D)),
            "b2": _w((lambda *s: torch.randn(*s, dtype=torch.bfloat16) * 1.6)(D)),
        }
    _B_in = _B_setup()

    return {
        "A_x": _A_in["x"],
        "A_w_r": _A_in["w_r"],
        "A_w_i": _A_in["w_i"],
        "B_x": _B_in["x"],
        "B_w1": _B_in["w1"],
        "B_b1": _B_in["b1"],
        "B_w2": _B_in["w2"],
        "B_b2": _B_in["b2"],
    }

def reference(A_x, A_w_r, A_w_i, B_x, B_w1, B_b1, B_w2, B_b2):
    def _A_ref(x, w_r, w_i):
        B, S, D = x.shape
        X = (lambda x, axes=(-2,-1): torch.fft.rfft2(x.float(), dim=axes))(x, axes=(-2, -1))
        W = w_r + 1j * w_i
        X = X * W
        y = (lambda x, s, axes=(-2,-1): torch.fft.irfft2(x, s=s, dim=axes).to(torch.bfloat16))(X, (S, D), axes=(-2, -1))
        return y

    def _B_ref(x, w1, b1, w2, b2):
        h = torch.einsum("bsd,df->bsf", x, w1) + b1
        zero = torch.zeros_like(h)
        r = torch.where(h > zero, h, zero)
        h = r * r
        out = torch.einsum("bsf,fd->bsd", h, w2) + b2
        return out

    x = A_x
    h = x + _A_ref(_layernorm(x, axis=-1), A_w_r, A_w_i)
    h2 = h + _B_ref(_layernorm(h, axis=-1), B_w1, B_b1, B_w2, B_b2)
    return h2
```

```python
import math, struct, sys

NAME = "sequential_preLN__spectral_gfnet__dense_activation_squared_relu__prompt"
OUT = "cdna_kernels/%s.s" % NAME

WS_X1 = 0x0000000
WS_WT = 0x0600000
WS_H = 0x0A00000
WS_LN2F = 0x0D00000
WS_HF = 0x1000000
WS_W1F = 0x1800000
WS_W2F = 0x1A00000
X1_BYTES = 322 * 2048 * 8
WT_BYTES = 322 * 2048 * 4
H_BYTES = 2048 * 640 * 2
HF_BYTES = 2048 * 1536 * 2
WF_BYTES = 640 * 1536 * 2


def f2u(x):
    return struct.unpack("<I", struct.pack("<f", x))[0]


def vp(i):
    assert i % 2 == 0, i
    return "v[%d:%d]" % (i, i + 1)


def vq(i):
    assert i % 2 == 0, i
    return "v[%d:%d]" % (i, i + 3)


def sp(i):
    assert i % 2 == 0
    return "s[%d:%d]" % (i, i + 1)


def sq(i):
    assert i % 4 == 0
    return "s[%d:%d]" % (i, i + 3)


UID = 0


class K:
    def __init__(self):
        self.L = []
        self.q = []
        self.uid = 0

    def e(self, s):
        self.L.append("    " + s)

    def label(self, l):
        self.L.append(l + ":")

    def newlabel(self, base):
        global UID
        UID += 1
        return "L_%s_%d" % (base, UID)

    def vm(self, s, tag):
        self.e(s)
        self.q.append(tag)

    def vmwait(self, *tags):
        last = -1
        for i, t in enumerate(self.q):
            if t in tags:
                last = i
        assert last >= 0, tags
        n = len(self.q) - 1 - last
        assert n <= 63
        self.e("s_waitcnt vmcnt(%d)" % n)
        self.q = self.q[last + 1:]

    def vmreset(self):
        self.q = []

    def nop(self, n):
        while n > 0:
            m = min(n, 16)
            self.e("s_nop %d" % (m - 1))
            n -= m

    def srd(self, d, base, nbytes, add=0):
        self.e("s_add_u32 s%d, s%d, 0x%x" % (d, base, add))
        self.e("s_addc_u32 s%d, s%d, 0" % (d + 1, base + 1))
        self.e("s_and_b32 s%d, s%d, 0xffff" % (d + 1, d + 1))
        self.e("s_mov_b32 s%d, 0x%x" % (d + 2, nbytes))
        self.e("s_mov_b32 s%d, 0x20000" % (d + 3))

    def srd_table(self, d, label, nbytes):
        l = self.newlabel("pc")
        self.e("s_getpc_b64 %s" % sp(d))
        self.label(l)
        self.e("s_add_u32 s%d, s%d, %s - %s" % (d, d, label, l))
        self.e("s_addc_u32 s%d, s%d, 0" % (d + 1, d + 1))
        self.e("s_and_b32 s%d, s%d, 0xffff" % (d + 1, d + 1))
        self.e("s_mov_b32 s%d, 0x%x" % (d + 2, nbytes))
        self.e("s_mov_b32 s%d, 0x20000" % (d + 3))

    def sconst2(self, d, val):
        self.e("s_mov_b32 s%d, 0x%08x" % (d, f2u(val)))
        self.e("s_mov_b32 s%d, 0x%08x" % (d + 1, f2u(val)))

    def cadd(self, d, a, b):
        self.e("v_pk_add_f32 %s, %s, %s" % (vp(d), vp(a), vp(b)))

    def csub(self, d, a, b):
        self.e("v_pk_add_f32 %s, %s, %s neg_lo:[0,1] neg_hi:[0,1]" % (vp(d), vp(a), vp(b)))

    def cadd_i(self, d, a, b, sign):
        if sign > 0:
            self.e("v_pk_add_f32 %s, %s, %s op_sel:[0,1] op_sel_hi:[1,0] neg_lo:[0,1]" % (vp(d), vp(a), vp(b)))
        else:
            self.e("v_pk_add_f32 %s, %s, %s op_sel:[0,1] op_sel_hi:[1,0] neg_hi:[0,1]" % (vp(d), vp(a), vp(b)))

    def cfma_s(self, d, a, s, c, neg=False):
        m = " neg_lo:[1,0,0] neg_hi:[1,0,0]" if neg else ""
        self.e("v_pk_fma_f32 %s, %s, %s, %s%s" % (vp(d), vp(a), sp(s), vp(c), m))

    def cmul_s(self, d, a, s):
        self.e("v_pk_mul_f32 %s, %s, %s" % (vp(d), vp(a), sp(s)))

    def cfma_si(self, d, a, s, c, sign):
        if sign > 0:
            m = "neg_lo:[1,0,0]"
        else:
            m = "neg_hi:[1,0,0]"
        self.e("v_pk_fma_f32 %s, %s, %s, %s op_sel:[1,0,0] op_sel_hi:[0,1,1] %s" % (vp(d), vp(a), sp(s), vp(c), m))

    def cmul(self, d, x, w, t, conj=False):
        self.e("v_pk_mul_f32 %s, %s, %s op_sel:[0,0] op_sel_hi:[1,0]" % (vp(t), vp(x), vp(w)))
        m = "neg_hi:[1,0,0]" if conj else "neg_lo:[1,0,0]"
        self.e("v_pk_fma_f32 %s, %s, %s, %s op_sel:[1,1,0] op_sel_hi:[0,1,1] %s" % (vp(d), vp(x), vp(w), vp(t), m))

    def fft8(self, X, T, sR, inv):
        sg = 1 if inv else -1
        for j in range(4):
            self.cadd(T[j], X[j], X[j + 4])
            self.csub(T[j + 4], X[j], X[j + 4])
        b0, b1, b2, b3, u5, u7, d0, d1 = X
        self.cadd(b0, T[0], T[2])
        self.csub(b1, T[0], T[2])
        self.cadd(b2, T[1], T[3])
        self.csub(b3, T[1], T[3])
        a5, a7 = T[5], T[7]
        if not inv:
            self.e("v_pk_add_f32 %s, %s, %s op_sel:[0,1] op_sel_hi:[1,0] neg_hi:[0,1]" % (vp(u5), vp(a5), vp(a5)))
            self.e("v_pk_add_f32 %s, %s, %s op_sel:[0,1] op_sel_hi:[1,0] neg_lo:[1,0] neg_hi:[1,1]" % (vp(u7), vp(a7), vp(a7)))
        else:
            self.e("v_pk_add_f32 %s, %s, %s op_sel:[0,1] op_sel_hi:[1,0] neg_lo:[0,1]" % (vp(u5), vp(a5), vp(a5)))
            self.e("v_pk_add_f32 %s, %s, %s op_sel:[0,1] op_sel_hi:[1,0] neg_lo:[1,1] neg_hi:[1,0]" % (vp(u7), vp(a7), vp(a7)))
        self.cadd_i(d0, T[4], T[6], sg)
        self.cadd_i(d1, T[4], T[6], -sg)
        d2u, d3u = T[5], T[7]
        self.cadd(d2u, u5, u7)
        self.csub(d3u, u5, u7)
        self.cadd(T[0], b0, b2)
        self.csub(T[4], b0, b2)
        self.cadd_i(T[2], b1, b3, sg)
        self.cadd_i(T[6], b1, b3, -sg)
        self.cfma_s(T[1], d2u, sR, d0)
        self.cfma_s(T[5], d2u, sR, d0, neg=True)
        self.cfma_si(T[3], d3u, sR, d1, sg)
        self.cfma_si(T[7], d3u, sR, d1, -sg)

    def fft4(self, X, T, inv):
        sg = 1 if inv else -1
        self.cadd(T[0], X[0], X[2])
        self.csub(T[1], X[0], X[2])
        self.cadd(T[2], X[1], X[3])
        self.csub(T[3], X[1], X[3])
        self.cadd(X[0], T[0], T[2])
        self.csub(X[2], T[0], T[2])
        self.cadd_i(X[1], T[1], T[3], sg)
        self.cadd_i(X[3], T[1], T[3], -sg)

    def dft5(self, Y, X, C, inv):
        sg = 1 if inv else -1
        t1, t2, t3, t4, s, a, b, c, d = X[:9]
        self.cadd(t1, Y[1], Y[4])
        self.cadd(t2, Y[2], Y[3])
        self.csub(t3, Y[1], Y[4])
        self.csub(t4, Y[2], Y[3])
        self.cfma_s(a, t1, C['c1'], Y[0])
        self.cfma_s(b, t1, C['c2'], Y[0])
        self.cmul_s(c, t3, C['s1'])
        self.cmul_s(d, t3, C['s2'])
        self.cadd(s, t1, t2)
        self.cfma_s(a, t2, C['c2'], a)
        self.cfma_s(b, t2, C['c1'], b)
        self.cfma_s(c, t4, C['s2'], c)
        self.cfma_s(d, t4, C['s1'], d, neg=True)
        self.cadd(Y[0], Y[0], s)
        self.cadd_i(Y[1], a, c, sg)
        self.cadd_i(Y[4], a, c, -sg)
        self.cadd_i(Y[2], b, d, sg)
        self.cadd_i(Y[3], b, d, -sg)

    def fft10(self, X, T, C, inv):
        for n2 in range(5):
            i0 = (2 * n2) % 10
            i1 = (5 + 2 * n2) % 10
            self.cadd(T[n2], X[i0], X[i1])
            self.csub(T[5 + n2], X[i0], X[i1])
        self.dft5(T[0:5], X, C, inv)
        self.dft5(T[5:10], X, C, inv)
        R = [None] * 10
        for k2 in range(5):
            R[(6 * k2) % 10] = T[k2]
            R[(5 + 6 * k2) % 10] = T[5 + k2]
        return R

    def consts5(self, base):
        C = {'c1': base, 'c2': base + 2, 's1': base + 4, 's2': base + 6}
        self.sconst2(C['c1'], math.cos(2 * math.pi / 5))
        self.sconst2(C['c2'], math.cos(4 * math.pi / 5))
        self.sconst2(C['s1'], math.sin(2 * math.pi / 5))
        self.sconst2(C['s2'], math.sin(4 * math.pi / 5))
        return C

    def allreduce2(self, a, b, ta, tb):
        for perm in ("quad_perm:[1,0,3,2]", "quad_perm:[2,3,0,1]", "row_half_mirror", "row_mirror"):
            self.nop(2)
            self.e("v_add_f32_dpp v%d, v%d, v%d %s row_mask:0xf bank_mask:0xf" % (a, a, a, perm))
            self.e("v_add_f32_dpp v%d, v%d, v%d %s row_mask:0xf bank_mask:0xf" % (b, b, b, perm))
        for sw in ("v_permlane16_swap_b32", "v_permlane32_swap_b32"):
            self.e("v_mov_b32 v%d, v%d" % (ta, a))
            self.e("v_mov_b32 v%d, v%d" % (tb, b))
            self.nop(2)
            self.e("%s v%d, v%d" % (sw, a, ta))
            self.e("%s v%d, v%d" % (sw, b, tb))
            self.nop(1)
            self.e("v_add_f32 v%d, v%d, v%d" % (a, a, ta))
            self.e("v_add_f32 v%d, v%d, v%d" % (b, b, tb))

    def div640(self, d, s, t, sInv, s640):
        self.e("v_mul_f32 v%d, s%d, v%d" % (d, sInv, s))
        self.e("v_fma_f32 v%d, -v%d, s%d, v%d" % (t, d, s640, s))
        self.e("v_fma_f32 v%d, v%d, s%d, v%d" % (d, t, sInv, d))

    def layernorm2(self, A, B, OUTP, tmp, sInv, s640, sEps):
        sa, sb, ta, tb, ma, mb, va, vb, ra, rb, p, d0, d1, e0 = tmp[:14]
        self.e("v_add_f32 v%d, v%d, v%d" % (sa, A[0], A[1]))
        self.e("v_add_f32 v%d, v%d, v%d" % (sb, B[0], B[1]))
        for j in range(2, 10):
            self.e("v_add_f32 v%d, v%d, v%d" % (sa, sa, A[j]))
            self.e("v_add_f32 v%d, v%d, v%d" % (sb, sb, B[j]))
        self.allreduce2(sa, sb, ta, tb)
        self.div640(ma, sa, ta, sInv, s640)
        self.div640(mb, sb, tb, sInv, s640)
        for j in range(10):
            self.e("v_sub_f32 v%d, v%d, v%d" % (d0, A[j], ma))
            self.e("v_sub_f32 v%d, v%d, v%d" % (d1, B[j], mb))
            if j == 0:
                self.e("v_mul_f32 v%d, v%d, v%d" % (sa, d0, d0))
                self.e("v_mul_f32 v%d, v%d, v%d" % (sb, d1, d1))
            else:
                self.e("v_fma_f32 v%d, v%d, v%d, v%d" % (sa, d0, d0, sa))
                self.e("v_fma_f32 v%d, v%d, v%d, v%d" % (sb, d1, d1, sb))
        self.allreduce2(sa, sb, ta, tb)
        self.div640(va, sa, ta, sInv, s640)
        self.div640(vb, sb, tb, sInv, s640)
        self.e("v_cvt_pk_bf16_f32 v%d, v%d, v%d" % (p, ma, mb))
        self.e("v_lshlrev_b32 v%d, 16, v%d" % (ma, p))
        self.e("v_and_b32 v%d, 0xffff0000, v%d" % (mb, p))
        self.e("v_cvt_pk_bf16_f32 v%d, v%d, v%d" % (p, va, vb))
        self.e("v_lshlrev_b32 v%d, 16, v%d" % (va, p))
        self.e("v_and_b32 v%d, 0xffff0000, v%d" % (vb, p))
        self.e("v_add_f32 v%d, s%d, v%d" % (va, sEps, va))
        self.e("v_add_f32 v%d, s%d, v%d" % (vb, sEps, vb))
        self.e("v_cvt_pk_bf16_f32 v%d, v%d, v%d" % (p, va, vb))
        self.e("v_lshlrev_b32 v%d, 16, v%d" % (va, p))
        self.e("v_and_b32 v%d, 0xffff0000, v%d" % (vb, p))
        self.e("v_sqrt_f32 v%d, v%d" % (va, va))
        self.e("v_sqrt_f32 v%d, v%d" % (vb, vb))
        self.nop(1)
        self.e("v_cvt_pk_bf16_f32 v%d, v%d, v%d" % (p, va, vb))
        self.e("v_lshlrev_b32 v%d, 16, v%d" % (va, p))
        self.e("v_and_b32 v%d, 0xffff0000, v%d" % (vb, p))
        self.e("v_rcp_f32 v%d, v%d" % (ra, va))
        self.e("v_rcp_f32 v%d, v%d" % (rb, vb))
        self.nop(1)
        for j in range(10):
            o = OUTP[j]
            self.e("v_sub_f32 v%d, v%d, v%d" % (d0, A[j], ma))
            self.e("v_sub_f32 v%d, v%d, v%d" % (d1, B[j], mb))
            self.e("v_cvt_pk_bf16_f32 v%d, v%d, v%d" % (p, d0, d1))
            self.e("v_lshlrev_b32 v%d, 16, v%d" % (d0, p))
            self.e("v_and_b32 v%d, 0xffff0000, v%d" % (d1, p))
            self.e("v_mul_f32 v%d, v%d, v%d" % (o, d0, ra))
            self.e("v_mul_f32 v%d, v%d, v%d" % (o + 1, d1, rb))
            self.e("v_fma_f32 v%d, -v%d, v%d, v%d" % (d0, o, va, d0))
            self.e("v_fma_f32 v%d, -v%d, v%d, v%d" % (d1, o + 1, vb, d1))
            self.e("v_fma_f32 v%d, v%d, v%d, v%d" % (o, d0, ra, o))
            self.e("v_fma_f32 v%d, v%d, v%d, v%d" % (o + 1, d1, rb, o + 1))
            self.e("v_cvt_pk_bf16_f32 v%d, v%d, v%d" % (p, o, o + 1))
            self.e("v_lshlrev_b32 v%d, 16, v%d" % (o, p))
            self.e("v_and_b32 v%d, 0xffff0000, v%d" % (o + 1, p))


def kernel_header(k, name):
    k.L.append(".p2align 8")
    k.L.append(".globl %s" % name)
    k.L.append(".type %s,@function" % name)
    k.label(name)


def kernel_desc(name, vgpr, sgpr=102):
    vg = (vgpr + 3) // 4 * 4
    return "\n".join([
        ".amdhsa_kernel %s" % name,
        "  .amdhsa_next_free_vgpr %d" % vgpr,
        "  .amdhsa_next_free_sgpr %d" % sgpr,
        "  .amdhsa_accum_offset %d" % vg,
        "  .amdhsa_group_segment_fixed_size 0",
        "  .amdhsa_kernarg_size 88",
        "  .amdhsa_user_sgpr_count 2",
        "  .amdhsa_user_sgpr_kernarg_segment_ptr 1",
        "  .amdhsa_system_sgpr_workgroup_id_x 1",
        ".end_amdhsa_kernel"])


R2 = 1.0 / math.sqrt(2.0)
P1 = 576
A2BASE = 40 * P1
P3 = 5120

K1_MAIN = 256
K1_HELP = 77


def gen_k1():
    k = K()
    kernel_header(k, "k1_kernel")
    e = k.e
    e("s_load_dwordx2 s[4:5], s[0:1], 0")
    e("s_load_dwordx4 s[8:11], s[0:1], 8")
    e("s_load_dwordx2 s[6:7], s[0:1], 80")
    e("v_lshrrev_b32 v2, 6, v0")
    e("v_and_b32 v1, 63, v0")
    e("s_nop 0")
    e("v_readfirstlane_b32 s3, v2")
    e("s_waitcnt lgkmcnt(0)")
    e("s_cmp_ge_u32 s2, %d" % K1_MAIN)
    e("s_cbranch_scc1 K1_helper")
    k.srd(12, 4, H_BYTES)
    k.srd(16, 6, X1_BYTES, WS_X1)
    k.srd_table(20, "tw640", 640 * 8)
    k.sconst2(24, R2)
    C5 = k.consts5(26)
    e("s_mov_b32 s34, 0x%08x" % f2u(1.0 / 640.0))
    e("s_mov_b32 s35, 0x%08x" % f2u(640.0))
    e("s_mov_b32 s36, 0x%08x" % f2u(1e-5))
    X = [10 + 2 * i for i in range(10)]
    T = [30 + 2 * i for i in range(10)]
    TW1 = [50 + 2 * i for i in range(9)]
    TW2 = [68 + 2 * i for i in range(7)]
    RA = [100 + i for i in range(10)]
    RB = [110 + i for i in range(10)]
    TMP = [82 + i for i in range(14)]
    e("v_lshrrev_b32 v3, 3, v0")
    e("v_and_b32 v4, 7, v0")
    e("v_mul_u32_u24 v5, 80, v4")
    for q2 in range(1, 8):
        e("v_mul_u32_u24 v6, %d, v5" % q2)
        k.vm("buffer_load_dwordx2 %s, v6, s[20:23], 0 offen" % vp(TW2[q2 - 1]), "tw2")
    e("s_cmp_ge_u32 s3, 4")
    e("s_cbranch_scc1 K1_s1_done")
    e("s_lshl_b32 s37, s2, 3")
    e("s_lshl_b32 s38, s3, 1")
    e("s_add_u32 s37, s37, s38")
    e("s_mul_i32 s37, s37, 1280")
    e("v_lshlrev_b32 v5, 1, v1")
    for j in range(10):
        k.vm("buffer_load_ushort v%d, v5, s[12:15], s37 offen offset:%d" % (RA[j], j * 128), "x")
        k.vm("buffer_load_ushort v%d, v5, s[12:15], s37 offen offset:%d" % (RB[j], 1280 + j * 128), "x")
    e("v_lshlrev_b32 v5, 3, v1")
    for q1 in range(1, 10):
        e("v_mul_u32_u24 v6, %d, v5" % q1)
        k.vm("buffer_load_dwordx2 %s, v6, s[20:23], 0 offen" % vp(TW1[q1 - 1]), "tw1")
    k.vmwait("x")
    for j in range(10):
        e("v_lshlrev_b32 v%d, 16, v%d" % (RA[j], RA[j]))
        e("v_lshlrev_b32 v%d, 16, v%d" % (RB[j], RB[j]))
    k.layernorm2(RA, RB, X, TMP, 34, 35, 36)
    R = k.fft10(X, T, C5, False)
    k.vmwait("tw1")
    e("s_mul_i32 s38, s3, %d" % (10 * P1))
    e("v_lshlrev_b32 v5, 3, v1")
    e("v_add_u32 v5, s38, v5")
    for q1 in range(10):
        if q1:
            k.cmul(R[q1], R[q1], TW1[q1 - 1], X[0])
        e("ds_write_b64 v5, %s offset:%d" % (vp(R[q1]), q1 * P1))
    k.label("K1_s1_done")
    e("s_waitcnt vmcnt(0) lgkmcnt(0)")
    k.vmreset()
    e("s_barrier")
    X8 = X[:8]
    T8 = T[:8]
    e("v_mul_u32_u24 v5, %d, v3" % P1)
    e("v_lshl_add_u32 v5, v4, 3, v5")
    for j in range(8):
        e("ds_read_b64 %s, v5 offset:%d" % (vp(X8[j]), j * 64))
    e("s_waitcnt lgkmcnt(0)")
    k.fft8(X8, T8, 24, False)
    for q2 in range(8):
        if q2:
            k.cmul(T8[q2], T8[q2], TW2[q2 - 1], X8[0])
        e("ds_write_b64 v5, %s offset:%d" % (vp(T8[q2]), A2BASE + q2 * 64))
    e("s_waitcnt lgkmcnt(0)")
    e("s_barrier")
    e("v_mul_u32_u24 v5, %d, v3" % P1)
    e("v_lshl_add_u32 v5, v4, 6, v5")
    for j in range(4):
        e("ds_read_b128 %s, v5 offset:%d" % (vq(X8[2 * j]), A2BASE + j * 16))
    e("v_mul_u32_u24 v6, 205, v3")
    e("v_lshrrev_b32 v6, 11, v6")
    e("v_mul_u32_u24 v7, 10, v6")
    e("v_sub_u32 v7, v3, v7")
    e("v_mul_u32_u24 v8, 10, v4")
    e("v_add_u32 v7, v7, v8")
    e("v_lshlrev_b32 v7, 3, v7")
    e("v_mul_u32_u24 v6, %d, v6" % P3)
    e("v_add_u32 v7, v7, v6")
    e("s_waitcnt lgkmcnt(0)")
    k.fft8(X8, T8, 24, False)
    for q3 in range(8):
        e("ds_write_b64 v7, %s offset:%d" % (vp(T8[q3]), q3 * 640))
    e("s_waitcnt lgkmcnt(0)")
    e("s_barrier")
    e("s_lshl_b32 s37, s2, 6")
    e("v_mov_b32 v9, v0")
    e("s_mov_b32 s38, 0")
    k.label("K1_sep")
    e("v_sub_u32 v6, 640, v9")
    e("v_cmp_eq_u32 vcc, 0, v9")
    e("v_lshlrev_b32 v5, 3, v9")
    e("s_nop 1")
    e("v_cndmask_b32 v6, v6, 0, vcc")
    e("v_lshlrev_b32 v6, 3, v6")
    for p in range(4):
        e("ds_read_b64 %s, v5 offset:%d" % (vp(X[2 * p]), p * P3))
        e("ds_read_b64 %s, v6 offset:%d" % (vp(X[2 * p + 1]), p * P3))
    e("v_lshlrev_b32 v7, 14, v9")
    e("s_waitcnt lgkmcnt(0)")
    for p in range(4):
        z, y = X[2 * p], X[2 * p + 1]
        o = T[2 * p]
        e("v_pk_add_f32 %s, %s, %s neg_hi:[0,1]" % (vp(o), vp(z), vp(y)))
        e("v_pk_add_f32 %s, %s, %s op_sel:[1,1] op_sel_hi:[0,0] neg_hi:[1,0]" % (vp(o + 2), vp(z), vp(y)))
    for p in range(4):
        e("buffer_store_dwordx4 %s, v7, s[16:19], s37 offen offset:%d" % (vq(T[2 * p]), p * 16))
    e("s_cmp_eq_u32 s38, 1")
    e("s_cbranch_scc1 K1_end")
    e("s_mov_b32 s38, 1")
    e("v_cmp_eq_u32 vcc, 0, v0")
    e("v_mov_b32 v9, 320")
    e("s_and_saveexec_b64 s[40:41], vcc")
    e("s_cbranch_execz K1_end")
    e("s_nop 1")
    e("s_branch K1_sep")
    k.label("K1_end")
    e("s_endpgm")
    k.label("K1_helper")
    e("s_sub_u32 s4, s2, %d" % K1_MAIN)
    e("s_mul_i32 s4, s4, 5")
    e("s_add_u32 s4, s4, s3")
    e("s_cmp_ge_u32 s4, 384")
    e("s_cbranch_scc1 K1_end")
    k.srd(12, 8, 2048 * 321 * 2)
    k.srd(16, 10, 2048 * 321 * 2)
    k.srd(20, 6, WT_BYTES, WS_WT)
    e("s_and_b32 s5, s4, 63")
    e("s_lshr_b32 s24, s4, 6")
    e("s_lshr_b32 s25, s5, 3")
    e("s_and_b32 s26, s5, 7")
    e("s_lshl_b32 s26, s26, 3")
    e("s_add_u32 s25, s25, s26")
    e("s_mul_i32 s25, s25, 642")
    e("s_lshl_b32 s27, s24, 6")
    e("v_add_u32 v2, s27, v1")
    e("v_lshlrev_b32 v3, 1, v2")
    e("v_lshlrev_b32 v4, 13, v2")
    e("s_lshl_b32 s28, s5, 7")
    e("v_cmp_gt_u32 vcc, 321, v2")
    e("s_and_saveexec_b64 s[40:41], vcc")
    e("s_cbranch_execz K1_end")
    for q3 in range(8):
        for q4 in range(4):
            i = q3 * 4 + q4
            e("s_add_u32 s29, s25, %d" % ((64 * q3 + 512 * q4) * 642))
            e("buffer_load_ushort v%d, v3, s[12:15], s29 offen" % (10 + i))
            e("buffer_load_ushort v%d, v3, s[16:19], s29 offen" % (42 + i))
        if q3 == 3:
            e("s_waitcnt vmcnt(16)")
    e("s_waitcnt vmcnt(0)")
    for i in range(32):
        e("v_lshl_or_b32 v%d, v%d, 16, v%d" % (10 + i, 42 + i, 10 + i))
    for i in range(8):
        e("buffer_store_dwordx4 %s, v4, s[20:23], s28 offen offset:%d" % (vq(10 + 4 * i), i * 16))
    e("s_endpgm")
    return k, 120


K2_MAIN = 321
K2_HELP = 240
E1B = 0
E2B = 16384
E3B = E2B + 64 * 288
K2_LDS = E3B + 64 * 288


def wprep_variant(k, which):
    e = k.e
    if which == 1:
        pitch, per, srcofs, dst, nslab = 3072, 10, 32, WS_W1F, 40
    else:
        pitch, per, srcofs, dst, nslab = 1280, 24, 48, WS_W2F, 96
    e("s_load_dwordx2 s[8:9], s[0:1], %d" % srcofs)
    magic = (1 << 20) // per + 1
    e("s_mul_i32 s5, s4, %d" % magic)
    e("s_lshr_b32 s5, s5, 20")
    e("s_mul_i32 s24, s5, %d" % per)
    e("s_sub_u32 s24, s4, s24")
    e("s_waitcnt lgkmcnt(0)")
    k.srd(12, 8, WF_BYTES)
    k.srd(16, 6, WF_BYTES, dst)
    hs = 8 * pitch if which == 1 else 4 * pitch
    e("v_lshrrev_b32 v2, 5, v1")
    e("v_and_b32 v3, 31, v1")
    e("v_mul_u32_u24 v2, %d, v2" % hs)
    e("v_lshl_add_u32 v2, v3, 1, v2")
    e("v_lshlrev_b32 v4, 4, v1")
    e("s_lshl_b32 s25, s5, 6")
    e("s_mul_i32 s26, s24, %d" % (64 * pitch))
    e("s_add_u32 s25, s25, s26")
    e("s_mul_i32 s27, s5, %d" % (nslab * 1024))
    e("s_lshl_b32 s26, s24, 12")
    e("s_add_u32 s27, s27, s26")
    for sl in range(4):
        for j in range(8):
            jo = j if which == 1 else (8 * (j >> 2) + (j & 3))
            e("s_add_u32 s28, s25, %d" % ((16 * sl + jo) * pitch))
            e("buffer_load_ushort v%d, v2, s[12:15], s28 offen" % (10 + sl * 8 + j))
    e("s_waitcnt vmcnt(0)")
    for sl in range(4):
        for jj in range(4):
            e("v_lshl_or_b32 v%d, v%d, 16, v%d" % (50 + sl * 4 + jj, 10 + sl * 8 + 2 * jj + 1, 10 + sl * 8 + 2 * jj))
    for sl in range(4):
        e("buffer_store_dwordx4 %s, v4, s[16:19], s27 offen offset:%d" % (vq(50 + sl * 4), sl * 1024))
    e("s_endpgm")


def gen_k2():
    k = K()
    kernel_header(k, "k2_kernel")
    e = k.e
    e("s_load_dwordx2 s[6:7], s[0:1], 80")
    e("v_lshrrev_b32 v2, 6, v0")
    e("v_and_b32 v1, 63, v0")
    e("s_nop 0")
    e("v_readfirstlane_b32 s3, v2")
    e("s_waitcnt lgkmcnt(0)")
    e("s_cmp_ge_u32 s2, %d" % K2_MAIN)
    e("s_cbranch_scc1 K2_helper")
    k.srd(12, 6, X1_BYTES, WS_X1)
    k.srd(16, 6, WT_BYTES, WS_WT)
    k.srd_table(20, "tw2048", 2048 * 8)
    k.sconst2(24, R2)
    k.sconst2(26, 1.0 / (2.0 * 2048 * 640))
    X = [10 + 2 * i for i in range(8)]
    T = [26 + 2 * i for i in range(8)]
    TW1 = [42 + 2 * i for i in range(7)]
    TW2 = [56 + 2 * i for i in range(7)]
    TW3 = [70 + 2 * i for i in range(7)]
    WV = 84
    e("s_lshl_b32 s28, s2, 14")
    e("v_lshlrev_b32 v5, 3, v0")
    for j in range(8):
        k.vm("buffer_load_dwordx2 %s, v5, s[12:15], s28 offen offset:%d" % (vp(X[j]), (j * 2048) % 4096), "x")
        if j % 2 == 1 and j < 7:
            e("s_add_u32 s28, s28, 4096")
    for q in range(1, 8):
        e("v_mul_u32_u24 v6, %d, v5" % q)
        k.vm("buffer_load_dwordx2 %s, v6, s[20:23], 0 offen" % vp(TW1[q - 1]), "tw1")
    e("v_and_b32 v3, 31, v0")
    e("v_lshlrev_b32 v7, 6, v3")
    for q in range(1, 8):
        e("v_mul_u32_u24 v6, %d, v7" % q)
        k.vm("buffer_load_dwordx2 %s, v6, s[20:23], 0 offen" % vp(TW2[q - 1]), "tw2")
    e("v_and_b32 v4, 3, v0")
    e("v_lshlrev_b32 v7, 9, v4")
    for q in range(1, 8):
        e("v_mul_u32_u24 v6, %d, v7" % q)
        k.vm("buffer_load_dwordx2 %s, v6, s[20:23], 0 offen" % vp(TW3[q - 1]), "tw3")
    e("s_lshl_b32 s29, s2, 13")
    e("v_lshlrev_b32 v6, 5, v0")
    k.vm("buffer_load_dwordx4 %s, v6, s[16:19], s29 offen" % vq(WV), "w")
    k.vm("buffer_load_dwordx4 %s, v6, s[16:19], s29 offen offset:16" % vq(WV + 4), "w")
    e("v_lshrrev_b32 v6, 5, v0")
    e("v_lshlrev_b32 v6, 11, v6")
    e("v_lshl_add_u32 v6, v3, 3, v6")
    e("v_lshrrev_b32 v7, 5, v0")
    e("v_mul_u32_u24 v7, 2304, v7")
    e("v_lshl_add_u32 v7, v3, 3, v7")
    e("v_lshrrev_b32 v8, 2, v0")
    e("v_mul_u32_u24 v8, 288, v8")
    e("v_lshl_add_u32 v9, v4, 6, v8")
    e("v_lshl_add_u32 v8, v4, 3, v8")
    k.vmwait("x")
    k.fft8(X, T, 24, False)
    k.vmwait("tw1")
    for q in range(8):
        if q:
            k.cmul(T[q], T[q], TW1[q - 1], X[0])
        e("ds_write_b64 v5, %s offset:%d" % (vp(T[q]), E1B + q * 2048))
    e("s_waitcnt lgkmcnt(0)")
    e("s_barrier")
    for j in range(8):
        e("ds_read_b64 %s, v6 offset:%d" % (vp(X[j]), E1B + j * 256))
    e("s_waitcnt lgkmcnt(0)")
    k.fft8(X, T, 24, False)
    k.vmwait("tw2")
    for q in range(8):
        if q:
            k.cmul(T[q], T[q], TW2[q - 1], X[0])
        e("ds_write_b64 v7, %s offset:%d" % (vp(T[q]), E2B + q * 288))
    e("s_waitcnt lgkmcnt(0)")
    e("s_barrier")
    for j in range(8):
        e("ds_read_b64 %s, v8 offset:%d" % (vp(X[j]), E2B + j * 32))
    e("s_waitcnt lgkmcnt(0)")
    k.fft8(X, T, 24, False)
    k.vmwait("tw3")
    for q in range(8):
        if q:
            k.cmul(T[q], T[q], TW3[q - 1], X[0])
        e("ds_write_b64 v8, %s offset:%d" % (vp(T[q]), E3B + q * 32))
    e("s_waitcnt lgkmcnt(0)")
    e("s_barrier")
    for j in range(4):
        e("ds_read_b128 %s, v9 offset:%d" % (vq(X[2 * j]), E3B + j * 16))
    e("s_waitcnt lgkmcnt(0)")
    k.fft4(X[0:4], T[0:4], False)
    k.fft4(X[4:8], T[4:8], False)
    k.vmwait("w")
    for i in range(8):
        w = T[0]
        e("v_lshlrev_b32 v%d, 16, v%d" % (w, WV + i))
        e("v_and_b32 v%d, 0xffff0000, v%d" % (w + 1, WV + i))
        k.cmul_s(w, w, 26)
        k.cmul(X[i], X[i], w, T[1])
    k.fft4(X[0:4], T[0:4], True)
    k.fft4(X[4:8], T[4:8], True)
    for j in range(4):
        e("ds_write_b128 v9, %s offset:%d" % (vq(X[2 * j]), E3B + j * 16))
    e("s_waitcnt lgkmcnt(0)")
    e("s_barrier")
    for q in range(8):
        e("ds_read_b64 %s, v8 offset:%d" % (vp(X[q]), E3B + q * 32))
    e("s_waitcnt lgkmcnt(0)")
    for q in range(1, 8):
        k.cmul(X[q], X[q], TW3[q - 1], T[0], conj=True)
    k.fft8(X, T, 24, True)
    for j in range(8):
        e("ds_write_b64 v8, %s offset:%d" % (vp(T[j]), E2B + j * 32))
    e("s_waitcnt lgkmcnt(0)")
    e("s_barrier")
    for q in range(8):
        e("ds_read_b64 %s, v7 offset:%d" % (vp(X[q]), E2B + q * 288))
    e("s_waitcnt lgkmcnt(0)")
    for q in range(1, 8):
        k.cmul(X[q], X[q], TW2[q - 1], T[0], conj=True)
    k.fft8(X, T, 24, True)
    for j in range(8):
        e("ds_write_b64 v6, %s offset:%d" % (vp(T[j]), E1B + j * 256))
    e("s_waitcnt lgkmcnt(0)")
    e("s_barrier")
    for q in range(8):
        e("ds_read_b64 %s, v5 offset:%d" % (vp(X[q]), E1B + q * 2048))
    e("s_waitcnt lgkmcnt(0)")
    for q in range(1, 8):
        k.cmul(X[q], X[q], TW1[q - 1], T[0], conj=True)
    k.fft8(X, T, 24, True)
    e("s_lshl_b32 s28, s2, 14")
    for j in range(8):
        e("buffer_store_dwordx2 %s, v5, s[12:15], s28 offen offset:%d" % (vp(T[j]), (j * 2048) % 4096))
        if j % 2 == 1 and j < 7:
            e("s_add_u32 s28, s28, 4096")
    k.label("K2_end")
    e("s_endpgm")
    k.label("K2_helper")
    e("s_sub_u32 s4, s2, %d" % K2_MAIN)
    e("s_lshl_b32 s4, s4, 2")
    e("s_add_u32 s4, s4, s3")
    e("s_cmp_ge_u32 s4, 960")
    e("s_cbranch_scc1 K2_end")
    e("s_cmp_ge_u32 s4, 480")
    e("s_cbranch_scc1 K2_helper2")
    wprep_variant(k, 1)
    k.label("K2_helper2")
    e("s_sub_u32 s4, s4, 480")
    wprep_variant(k, 2)
    return k, 96


def gen_k3():
    k = K()
    kernel_header(k, "k3_kernel")
    e = k.e
    e("s_load_dwordx2 s[4:5], s[0:1], 0")
    e("s_load_dwordx2 s[6:7], s[0:1], 80")
    e("v_lshrrev_b32 v2, 6, v0")
    e("v_and_b32 v1, 63, v0")
    e("s_nop 0")
    e("v_readfirstlane_b32 s3, v2")
    e("s_waitcnt lgkmcnt(0)")
    e("s_cmp_ge_u32 s2, 256")
    e("s_cbranch_scc1 K3_end")
    k.srd(12, 4, H_BYTES)
    k.srd(16, 6, X1_BYTES, WS_X1)
    k.srd_table(20, "tw640", 640 * 8)
    k.srd(44, 6, H_BYTES, WS_H)
    k.srd(48, 6, H_BYTES, WS_LN2F)
    k.sconst2(24, R2)
    C5 = k.consts5(26)
    e("s_mov_b32 s34, 0x%08x" % f2u(1.0 / 640.0))
    e("s_mov_b32 s35, 0x%08x" % f2u(640.0))
    e("s_mov_b32 s36, 0x%08x" % f2u(1e-5))
    X = [10 + 2 * i for i in range(10)]
    T = [30 + 2 * i for i in range(10)]
    TW1 = [50 + 2 * i for i in range(9)]
    TW2 = [68 + 2 * i for i in range(7)]
    RA = [100 + i for i in range(10)]
    RB = [110 + i for i in range(10)]
    TMP = [82 + i for i in range(14)]
    e("v_lshrrev_b32 v3, 3, v0")
    e("v_and_b32 v4, 7, v0")
    e("s_lshl_b32 s37, s2, 6")
    e("v_mov_b32 v9, v0")
    e("s_mov_b32 s38, 0")
    e("s_mov_b64 s[40:41], exec")
    k.label("K3_ld")
    e("v_lshlrev_b32 v7, 14, v9")
    for p in range(4):
        e("buffer_load_dwordx4 %s, v7, s[16:19], s37 offen offset:%d" % (vq(X[2 * p]), p * 16))
    e("v_cmp_eq_u32 vcc, 320, v9")
    e("v_sub_u32 v6, 640, v9")
    e("s_nop 1")
    e("s_mov_b64 s[42:43], vcc")
    e("v_cmp_eq_u32 vcc, 0, v9")
    e("v_lshlrev_b32 v5, 3, v9")
    e("s_nop 1")
    e("v_cndmask_b32 v6, v6, 0, vcc")
    e("s_or_b64 vcc, vcc, s[42:43]")
    e("v_lshlrev_b32 v6, 3, v6")
    e("s_waitcnt vmcnt(0)")
    for p in range(4):
        a, b = X[2 * p], X[2 * p + 1]
        e("v_cndmask_b32 v%d, v%d, 0, vcc" % (a + 1, a + 1))
        e("v_cndmask_b32 v%d, v%d, 0, vcc" % (b + 1, b + 1))
        e("v_pk_add_f32 %s, %s, %s op_sel:[0,1] op_sel_hi:[1,0] neg_lo:[0,1]" % (vp(T[2 * p]), vp(a), vp(b)))
        e("v_pk_add_f32 %s, %s, %s op_sel:[0,1] op_sel_hi:[1,0] neg_hi:[1,0]" % (vp(T[2 * p + 1]), vp(a), vp(b)))
        e("ds_write_b64 v6, %s offset:%d" % (vp(T[2 * p + 1]), p * P3))
        e("ds_write_b64 v5, %s offset:%d" % (vp(T[2 * p]), p * P3))
    e("s_cmp_eq_u32 s38, 1")
    e("s_cbranch_scc1 K3_ld_done")
    e("s_mov_b32 s38, 1")
    e("v_cmp_eq_u32 vcc, 0, v0")
    e("v_mov_b32 v9, 320")
    e("s_and_saveexec_b64 s[40:41], vcc")
    e("s_cbranch_execz K3_ld_done")
    e("s_waitcnt lgkmcnt(0)")
    e("s_branch K3_ld")
    k.label("K3_ld_done")
    e("s_mov_b64 exec, -1")
    e("v_mul_u32_u24 v5, 80, v4")
    for n1 in range(1, 8):
        e("v_mul_u32_u24 v6, %d, v5" % n1)
        k.vm("buffer_load_dwordx2 %s, v6, s[20:23], 0 offen" % vp(TW2[n1 - 1]), "tw2")
    e("s_cmp_ge_u32 s3, 4")
    e("s_cbranch_scc1 K3_pre_done")
    e("s_lshl_b32 s37, s2, 3")
    e("s_lshl_b32 s38, s3, 1")
    e("s_add_u32 s39, s37, s38")
    e("s_mul_i32 s37, s39, 1280")
    e("v_lshlrev_b32 v5, 1, v1")
    for j in range(10):
        e("buffer_load_ushort v%d, v5, s[12:15], s37 offen offset:%d" % (RA[j], j * 128))
        e("buffer_load_ushort v%d, v5, s[12:15], s37 offen offset:%d" % (RB[j], 1280 + j * 128))
    e("v_lshlrev_b32 v5, 3, v1")
    for q1 in range(1, 10):
        e("v_mul_u32_u24 v6, %d, v5" % q1)
        e("buffer_load_dwordx2 %s, v6, s[20:23], 0 offen" % vp(TW1[q1 - 1]))
    k.label("K3_pre_done")
    e("s_waitcnt lgkmcnt(0)")
    e("s_barrier")
    X8 = X[:8]
    T8 = T[:8]
    e("v_mul_u32_u24 v6, 205, v3")
    e("v_lshrrev_b32 v6, 11, v6")
    e("v_mul_u32_u24 v7, 10, v6")
    e("v_sub_u32 v7, v3, v7")
    e("v_mul_u32_u24 v8, 10, v4")
    e("v_add_u32 v7, v7, v8")
    e("v_lshlrev_b32 v7, 3, v7")
    e("v_mul_u32_u24 v6, %d, v6" % P3)
    e("v_add_u32 v7, v7, v6")
    for q3 in range(8):
        e("ds_read_b64 %s, v7 offset:%d" % (vp(X8[q3]), q3 * 640))
    e("v_mul_u32_u24 v5, %d, v3" % P1)
    e("v_lshl_add_u32 v6, v4, 6, v5")
    e("v_lshl_add_u32 v5, v4, 3, v5")
    e("s_waitcnt lgkmcnt(0)")
    k.fft8(X8, T8, 24, True)
    e("s_waitcnt vmcnt(0)")
    k.vmreset()
    for n1 in range(1, 8):
        k.cmul(T8[n1], T8[n1], TW2[n1 - 1], X8[0], conj=True)
    for j in range(4):
        e("ds_write_b128 v6, %s offset:%d" % (vq(T8[2 * j]), A2BASE + j * 16))
    e("s_waitcnt lgkmcnt(0)")
    e("s_barrier")
    for q2 in range(8):
        e("ds_read_b64 %s, v5 offset:%d" % (vp(X8[q2]), A2BASE + q2 * 64))
    e("s_waitcnt lgkmcnt(0)")
    k.fft8(X8, T8, 24, True)
    for j in range(8):
        e("ds_write_b64 v5, %s offset:%d" % (vp(T8[j]), j * 64))
    e("s_waitcnt lgkmcnt(0)")
    e("s_barrier")
    e("s_cmp_ge_u32 s3, 4")
    e("s_cbranch_scc1 K3_end")
    e("s_mul_i32 s38, s3, %d" % (10 * P1))
    e("v_lshlrev_b32 v5, 3, v1")
    e("v_add_u32 v5, s38, v5")
    for q1 in range(10):
        e("ds_read_b64 %s, v5 offset:%d" % (vp(X[q1]), q1 * P1))
    e("s_waitcnt lgkmcnt(0)")
    for q1 in range(1, 10):
        k.cmul(X[q1], X[q1], TW1[q1 - 1], T[0], conj=True)
    R = k.fft10(X, T, C5, True)
    p = TMP[10]
    e("v_lshlrev_b32 v5, 1, v1")
    for j in range(10):
        y = R[j]
        e("v_cvt_pk_bf16_f32 v%d, v%d, v%d" % (p, y, y + 1))
        e("v_lshlrev_b32 v%d, 16, v%d" % (RA[j], RA[j]))
        e("v_lshlrev_b32 v%d, 16, v%d" % (RB[j], RB[j]))
        e("v_lshlrev_b32 v%d, 16, v%d" % (y, p))
        e("v_and_b32 v%d, 0xffff0000, v%d" % (y + 1, p))
        e("v_add_f32 v%d, v%d, v%d" % (RA[j], RA[j], y))
        e("v_add_f32 v%d, v%d, v%d" % (RB[j], RB[j], y + 1))
        e("v_cvt_pk_bf16_f32 v%d, v%d, v%d" % (y, RA[j], RB[j]))
        e("v_lshlrev_b32 v%d, 16, v%d" % (RA[j], y))
        e("v_and_b32 v%d, 0xffff0000, v%d" % (RB[j], y))
        e("buffer_store_short v%d, v5, s[44:47], s37 offen offset:%d" % (y, j * 128))
        e("buffer_store_short_d16_hi v%d, v5, s[44:47], s37 offen offset:%d" % (y, 1280 + j * 128))
    k.layernorm2(RA, RB, X, TMP, 34, 35, 36)
    e("v_lshrrev_b32 v6, 4, v1")
    e("v_lshlrev_b32 v6, 10, v6")
    e("v_lshrrev_b32 v7, 3, v1")
    e("v_and_b32 v7, 1, v7")
    e("v_lshl_add_u32 v6, v7, 9, v6")
    e("v_and_b32 v7, 7, v1")
    e("v_lshl_add_u32 v6, v7, 1, v6")
    e("s_lshr_b32 s40, s39, 5")
    e("s_mul_i32 s40, s40, 40960")
    e("s_and_b32 s41, s39, 31")
    e("s_lshl_b32 s41, s41, 4")
    e("s_add_u32 s40, s40, s41")
    for j in range(10):
        o = X[j]
        e("v_cvt_pk_bf16_f32 v%d, v%d, v%d" % (o, o, o + 1))
        e("buffer_store_short v%d, v6, s[48:51], s40 offen" % o)
        e("buffer_store_short_d16_hi v%d, v6, s[48:51], s40 offen offset:16" % o)
        if j < 9:
            e("s_add_u32 s40, s40, 4096")
    k.label("K3_end")
    e("s_endpgm")
    return k, 120


K4_LDS = 3 * 40960


def epi_pair_relu2(k, a0, a1, bias, t0, t1, p, dst):
    e = k.e
    e("v_cvt_pk_bf16_f32 v%d, v%d, v%d" % (p, a0, a1))
    e("v_lshlrev_b32 v%d, 16, v%d" % (a0, p))
    e("v_and_b32 v%d, 0xffff0000, v%d" % (a1, p))
    e("v_lshlrev_b32 v%d, 16, v%d" % (t0, bias))
    e("v_and_b32 v%d, 0xffff0000, v%d" % (t1, bias))
    e("v_add_f32 v%d, v%d, v%d" % (a0, a0, t0))
    e("v_add_f32 v%d, v%d, v%d" % (a1, a1, t1))
    e("v_cvt_pk_bf16_f32 v%d, v%d, v%d" % (p, a0, a1))
    e("v_lshlrev_b32 v%d, 16, v%d" % (a0, p))
    e("v_and_b32 v%d, 0xffff0000, v%d" % (a1, p))
    e("v_max_f32 v%d, 0, v%d" % (a0, a0))
    e("v_max_f32 v%d, 0, v%d" % (a1, a1))
    e("v_mul_f32 v%d, v%d, v%d" % (a0, a0, a0))
    e("v_mul_f32 v%d, v%d, v%d" % (a1, a1, a1))
    e("v_cvt_pk_bf16_f32 v%d, v%d, v%d" % (dst, a0, a1))


def gen_k4():
    k = K()
    kernel_header(k, "k4_kernel")
    e = k.e
    e("s_load_dwordx2 s[4:5], s[0:1], 40")
    e("s_load_dwordx2 s[6:7], s[0:1], 80")
    e("v_lshrrev_b32 v2, 6, v0")
    e("v_and_b32 v1, 63, v0")
    e("s_nop 0")
    e("v_readfirstlane_b32 s3, v2")
    e("s_waitcnt lgkmcnt(0)")
    e("s_cmp_ge_u32 s2, 256")
    e("s_cbranch_scc1 K4_end")
    k.srd(12, 6, H_BYTES, WS_LN2F)
    k.srd(16, 6, WF_BYTES, WS_W1F)
    k.srd(20, 6, HF_BYTES, WS_HF)
    k.srd(24, 4, 3072)
    e("s_and_b32 s8, s2, 7")
    e("s_lshr_b32 s9, s2, 3")
    e("s_lshl_b32 s8, s8, 1")
    e("s_and_b32 s10, s9, 1")
    e("s_add_u32 s8, s8, s10")
    e("s_lshr_b32 s9, s9, 1")
    e("s_lshl_b32 s8, s8, 2")
    e("s_add_u32 s8, s8, s3")
    e("s_mul_i32 s10, s8, 40960")
    e("s_mul_i32 s11, s9, %d" % (3 * 40960))
    e("s_lshl_b32 s28, s3, 11")
    e("v_lshlrev_b32 v2, 4, v1")
    e("v_add_u32 v3, 40960, v2")
    e("v_add_u32 v4, 81920, v2")
    ACC = 16
    BF = 64
    AB = [224, 236]
    for i in range(48):
        e("v_mov_b32 v%d, 0" % (ACC + i))

    def issue_chunk(c):
        for i in range(3):
            e("s_add_u32 s29, s28, %d" % (i * 40960 + c * 8192))
            e("s_add_u32 s30, s29, s11")
            e("s_mov_b32 m0, s29")
            e("s_nop 0")
            k.vm("buffer_load_dwordx4 v2, s[16:19], s30 offen lds", "c%d" % c)
            k.vm("buffer_load_dwordx4 v2, s[16:19], s30 offen offset:1024 lds", "c%d" % c)
        for s in range(8):
            if s % 4 == 0:
                e("s_add_u32 s31, s10, %d" % ((8 * c + s) * 1024))
            k.vm("buffer_load_dwordx4 %s, v2, s[12:15], s31 offen offset:%d" % (vq(BF + (8 * c + s) * 4), (s % 4) * 1024), "c%d" % c)

    def areads(slab, buf):
        for i in range(3):
            e("ds_read_b128 %s, v%d offset:%d" % (vq(AB[buf] + 4 * i), 2 + i, slab * 1024))

    for c in range(4):
        issue_chunk(c)
    for c in range(5):
        k.vmwait("c%d" % c)
        e("s_barrier")
        if c == 0:
            issue_chunk(4)
        if c == 1:
            e("v_lshrrev_b32 v5, 5, v1")
            e("v_lshlrev_b32 v5, 3, v5")
            e("s_mul_i32 s32, s9, 192")
            for i in range(3):
                for g in range(4):
                    k.vm("buffer_load_dwordx2 %s, v5, s[24:27], s32 offen offset:%d" % (vp(BF + (i * 4 + g) * 2), i * 64 + g * 16), "bias")
        areads(8 * c, 0)
        for s in range(8):
            slab = 8 * c + s
            buf = s % 2
            if s < 7:
                areads(slab + 1, 1 - buf)
                e("s_waitcnt lgkmcnt(3)")
            else:
                e("s_waitcnt lgkmcnt(0)")
            for i in range(3):
                e("v_mfma_f32_32x32x16_bf16 v[%d:%d], %s, %s, v[%d:%d]" % (
                    ACC + 16 * i, ACC + 16 * i + 15, vq(AB[buf] + 4 * i), vq(BF + slab * 4), ACC + 16 * i, ACC + 16 * i + 15))
    k.vmwait("bias")
    k.nop(16)
    e("s_mul_i32 s32, s8, %d" % (96 * 1024))
    e("s_mul_i32 s33, s9, %d" % (6 * 1024))
    e("s_add_u32 s32, s32, s33")
    PK = 100
    for i in range(3):
        for g in range(4):
            for hp in range(2):
                a = ACC + 16 * i + 4 * g + 2 * hp
                epi_pair_relu2(k, a, a + 1, BF + (i * 4 + g) * 2 + hp, 6, 7, 8, PK + i * 8 + g * 2 + hp)
    for i in range(3):
        for sl in range(2):
            e("buffer_store_dwordx4 %s, v2, s[20:23], s32 offen offset:%d" % (vq(PK + i * 8 + sl * 4), (i * 2 + sl) * 1024 % 4096)
              if (i * 2 + sl) < 4 else
              "buffer_store_dwordx4 %s, v2, s[20:23], s33 offen offset:%d" % (vq(PK + i * 8 + sl * 4), ((i * 2 + sl) - 4) * 1024))
        if i == 1:
            e("s_add_u32 s33, s32, 4096")
    k.label("K4_end")
    e("s_endpgm")
    return k, 248


K5_LDS = 4 * 16384


def gen_k5():
    k = K()
    kernel_header(k, "k5_kernel")
    e = k.e
    e("s_load_dwordx4 s[4:7], s[0:1], 56")
    e("s_load_dwordx2 s[8:9], s[0:1], 80")
    e("v_lshrrev_b32 v2, 6, v0")
    e("v_and_b32 v1, 63, v0")
    e("s_nop 0")
    e("v_readfirstlane_b32 s3, v2")
    e("s_waitcnt lgkmcnt(0)")
    e("s_cmp_ge_u32 s2, 160")
    e("s_cbranch_scc1 K5_end")
    k.srd(12, 8, HF_BYTES, WS_HF)
    k.srd(16, 8, WF_BYTES, WS_W2F)
    k.srd(20, 6, H_BYTES)
    k.srd(24, 4, 1280)
    k.srd(36, 8, H_BYTES, WS_H)
    e("s_and_b32 s8, s2, 7")
    e("s_lshr_b32 s9, s2, 3")
    e("s_lshl_b32 s8, s8, 1")
    e("s_and_b32 s10, s9, 1")
    e("s_add_u32 s8, s8, s10")
    e("s_lshr_b32 s9, s9, 1")
    e("s_lshl_b32 s8, s8, 2")
    e("s_add_u32 s8, s8, s3")
    e("s_mul_i32 s10, s8, %d" % (96 * 1024))
    e("s_mul_i32 s11, s9, %d" % (2 * 96 * 1024))
    e("s_lshl_b32 s28, s3, 11")
    e("v_lshlrev_b32 v2, 4, v1")
    ACC = 16
    BF = 48
    AB = [144, 152]
    for i in range(32):
        e("v_mov_b32 v%d, 0" % (ACC + i))

    def dma(c):
        slot = c % 4
        for i in range(2):
            e("s_add_u32 s29, s28, %d" % (slot * 16384 + i * 8192))
            e("s_add_u32 s30, s28, %d" % (i * 96 * 1024 + c * 8192))
            e("s_add_u32 s30, s30, s11")
            e("s_mov_b32 m0, s29")
            e("s_nop 0")
            k.vm("buffer_load_dwordx4 v2, s[16:19], s30 offen lds", "d%d" % c)
            k.vm("buffer_load_dwordx4 v2, s[16:19], s30 offen offset:1024 lds", "d%d" % c)

    def bl(c):
        st = c % 3
        for s in range(8):
            if s % 4 == 0:
                e("s_add_u32 s31, s10, %d" % ((8 * c + s) * 1024))
            k.vm("buffer_load_dwordx4 %s, v2, s[12:15], s31 offen offset:%d" % (vq(BF + st * 32 + s * 4), (s % 4) * 1024), "b%d" % c)

    def areads(c, s, buf):
        slot = c % 4
        for i in range(2):
            e("ds_read_b128 %s, v2 offset:%d" % (vq(AB[buf] + 4 * i), slot * 16384 + i * 8192 + s * 1024))

    dma(0); bl(0); dma(1); bl(1); dma(2)
    EP = 160
    for c in range(12):
        k.vmwait("d%d" % c, "b%d" % c)
        e("s_barrier")
        if c + 3 < 12:
            dma(c + 3)
        if c + 2 < 12:
            bl(c + 2)
        if c == 10:
            e("v_and_b32 v5, 31, v1")
            e("s_lshl_b32 s32, s8, 5")
            e("v_add_u32 v5, s32, v5")
            e("v_mul_u32_u24 v5, 1280, v5")
            e("v_lshrrev_b32 v6, 5, v1")
            e("v_lshlrev_b32 v6, 3, v6")
            e("v_add_u32 v5, v5, v6")
            e("s_lshl_b32 s33, s9, 7")
            for i in range(2):
                for g in range(4):
                    k.vm("buffer_load_dwordx2 %s, v5, s[36:39], s33 offen offset:%d" % (vp(EP + (i * 4 + g) * 2), i * 64 + g * 16), "ep")
                    k.vm("buffer_load_dwordx2 %s, v6, s[24:27], s33 offen offset:%d" % (vp(EP + 16 + (i * 4 + g) * 2), i * 64 + g * 16), "ep")
        st = c % 3
        areads(c, 0, 0)
        for s in range(8):
            buf = s % 2
            if s < 7:
                areads(c, s + 1, 1 - buf)
                e("s_waitcnt lgkmcnt(2)")
            else:
                e("s_waitcnt lgkmcnt(0)")
            for i in range(2):
                e("v_mfma_f32_32x32x16_bf16 v[%d:%d], %s, %s, v[%d:%d]" % (
                    ACC + 16 * i, ACC + 16 * i + 15, vq(AB[buf] + 4 * i), vq(BF + st * 32 + s * 4), ACC + 16 * i, ACC + 16 * i + 15))
    k.vmwait("ep")
    k.nop(16)
    t0, t1, p = 7, 8, 9
    for i in range(2):
        for g in range(4):
            for hp in range(2):
                a0 = ACC + 16 * i + 4 * g + 2 * hp
                a1 = a0 + 1
                hres = EP + (i * 4 + g) * 2 + hp
                bias = EP + 16 + (i * 4 + g) * 2 + hp
                e("v_cvt_pk_bf16_f32 v%d, v%d, v%d" % (p, a0, a1))
                e("v_lshlrev_b32 v%d, 16, v%d" % (a0, p))
                e("v_and_b32 v%d, 0xffff0000, v%d" % (a1, p))
                e("v_lshlrev_b32 v%d, 16, v%d" % (t0, bias))
                e("v_and_b32 v%d, 0xffff0000, v%d" % (t1, bias))
                e("v_add_f32 v%d, v%d, v%d" % (a0, a0, t0))
                e("v_add_f32 v%d, v%d, v%d" % (a1, a1, t1))
                e("v_cvt_pk_bf16_f32 v%d, v%d, v%d" % (p, a0, a1))
                e("v_lshlrev_b32 v%d, 16, v%d" % (a0, p))
                e("v_and_b32 v%d, 0xffff0000, v%d" % (a1, p))
                e("v_lshlrev_b32 v%d, 16, v%d" % (t0, hres))
                e("v_and_b32 v%d, 0xffff0000, v%d" % (t1, hres))
                e("v_add_f32 v%d, v%d, v%d" % (a0, a0, t0))
                e("v_add_f32 v%d, v%d, v%d" % (a1, a1, t1))
                e("v_cvt_pk_bf16_f32 v%d, v%d, v%d" % (hres, a0, a1))
            e("buffer_store_dwordx2 %s, v5, s[20:23], s33 offen offset:%d" % (vp(EP + (i * 4 + g) * 2), i * 64 + g * 16))
    k.label("K5_end")
    e("s_endpgm")
    return k, 192


def table(name, n):
    out = [".p2align 8", ".type %s,@object" % name, "%s:" % name]
    for i in range(n):
        a = -2.0 * math.pi * i / n
        out.append("    .long 0x%08x, 0x%08x" % (f2u(math.cos(a)), f2u(math.sin(a))))
    out.append(".size %s, %d" % (name, n * 8))
    return out


def main():
    ref = open(OUT + ".ref").read().splitlines()
    head = [l for l in ref if l.startswith(";") and "@launch" not in l and "Override" not in l and "grid=ceil" not in l]
    k1, v1 = gen_k1()
    k2, v2 = gen_k2()
    k3, v3 = gen_k3()
    k4, v4 = gen_k4()
    k5, v5 = gen_k5()
    L = list(head)
    L.append("; @launch kernel=k1_kernel grid=(%d,1,1) block=(320,1,1) lds=%d" % (K1_MAIN + K1_HELP, 2 * A2BASE))
    L.append("; @launch kernel=k2_kernel grid=(%d,1,1) block=(256,1,1) lds=%d" % (K2_MAIN + K2_HELP, K2_LDS))
    L.append("; @launch kernel=k3_kernel grid=(256,1,1) block=(320,1,1) lds=%d" % (2 * A2BASE))
    L.append("; @launch kernel=k4_kernel grid=(256,1,1) block=(256,1,1) lds=%d" % K4_LDS)
    L.append("; @launch kernel=k5_kernel grid=(160,1,1) block=(256,1,1) lds=%d" % K5_LDS)
    L.append('.amdgcn_target "amdgcn-amd-amdhsa--gfx950"')
    L.append(".text")
    for kk in (k1, k2, k3, k4, k5):
        L += kk.L
    L += table("tw640", 640)
    L += table("tw2048", 2048)
    L.append('.section .rodata,"a"')
    L.append(".p2align 6")
    for nm, v in (("k1_kernel", v1), ("k2_kernel", v2), ("k3_kernel", v3), ("k4_kernel", v4), ("k5_kernel", v5)):
        L.append(kernel_desc(nm, v))
    open(OUT, "w").write("\n".join(L) + "\n")
    print("wrote", OUT, len(L), "lines")


if __name__ == "__main__":
    main()
```

```python
import math, struct, sys

NAME = "sequential_preLN__spectral_gfnet__dense_activation_squared_relu__prompt"
OUT = "cdna_kernels/%s.s" % NAME
REF = OUT + ".ref"
if len(sys.argv) > 1 and sys.argv[1] == "stamp":
    OUT = "stamp.s"

WS_X1 = 0x0000000
WS_WT = 0x0600000
WS_H = 0x0A00000
WS_LN2F = 0x0D00000
WS_HF = 0x1000000
WS_W1F = 0x1800000
WS_W2F = 0x1A00000
X1_BYTES = 322 * 2048 * 8
WT_BYTES = 322 * 2048 * 4
H_BYTES = 2048 * 640 * 2
HF_BYTES = 2048 * 1536 * 2
WF_BYTES = 640 * 1536 * 2


def f2u(x):
    return struct.unpack("<I", struct.pack("<f", x))[0]


def vp(i):
    assert i % 2 == 0, i
    return "v[%d:%d]" % (i, i + 1)


def vq(i):
    assert i % 2 == 0, i
    return "v[%d:%d]" % (i, i + 3)


def sp(i):
    assert i % 2 == 0
    return "s[%d:%d]" % (i, i + 1)


def sq(i):
    assert i % 4 == 0
    return "s[%d:%d]" % (i, i + 3)


UID = 0
STAMP = len(sys.argv) > 1 and sys.argv[1] == 'stamp'


class K:
    def __init__(self):
        self.L = []
        self.q = []
        self.uid = 0

    def e(self, s):
        self.L.append("    " + s)

    def label(self, l):
        self.L.append(l + ":")

    def newlabel(self, base):
        global UID
        UID += 1
        return "L_%s_%d" % (base, UID)

    def vm(self, s, tag):
        self.e(s)
        self.q.append(tag)

    def vmwait(self, *tags):
        last = -1
        for i, t in enumerate(self.q):
            if t in tags:
                last = i
        assert last >= 0, tags
        n = len(self.q) - 1 - last
        assert n <= 63
        self.e("s_waitcnt vmcnt(%d)" % n)
        self.q = self.q[last + 1:]

    def vmreset(self):
        self.q = []

    def nop(self, n):
        while n > 0:
            m = min(n, 16)
            self.e("s_nop %d" % (m - 1))
            n -= m

    def stamp(self, i):
        if not STAMP:
            return
        self.e("s_waitcnt lgkmcnt(0)")
        self.e("s_memtime s[%d:%d]" % (70 + 2 * i, 71 + 2 * i))
        self.e("s_waitcnt lgkmcnt(0)")

    def rt_begin(self):
        if not STAMP:
            return
        self.e("s_memrealtime s[96:97]")

    def rt_end(self, kid):
        if not STAMP:
            return
        self.e("s_waitcnt vmcnt(0) lgkmcnt(0)")
        self.e("s_memrealtime s[98:99]")
        self.e("s_load_dwordx2 s[64:65], s[0:1], 80")
        self.e("s_waitcnt lgkmcnt(0)")
        self.e("s_mov_b64 exec, -1")
        self.e("s_add_u32 s60, s64, 0x%x" % (0x3000000 + kid * 0x10000))
        self.e("s_addc_u32 s61, s65, 0")
        self.e("s_and_b32 s61, s61, 0xffff")
        self.e("s_mov_b32 s62, 0x10000")
        self.e("s_mov_b32 s63, 0x20000")
        self.e("s_lshl_b32 s66, s2, 5")
        self.e("s_lshl_b32 s67, s3, 2")
        self.e("s_add_u32 s66, s66, s67")
        self.e("v_mov_b32 v0, 0")
        self.e("v_mov_b32 v1, s96")
        self.e("v_mov_b32 v2, s98")
        self.e("s_cmp_ge_u32 s3, 4")
        l2 = self.newlabel("rt")
        self.e("s_cbranch_scc1 %s" % l2)
        self.e("buffer_store_dword v1, v0, s[60:63], s66 offen")
        self.e("buffer_store_dword v2, v0, s[60:63], s66 offen offset:16")
        self.label(l2)

    def stamp_flush(self, n):
        if not STAMP:
            return
        l = self.newlabel("st")
        self.e("s_waitcnt vmcnt(0) lgkmcnt(0)")
        self.e("s_memtime s[%d:%d]" % (70 + 2 * n, 71 + 2 * n))
        self.e("s_load_dwordx2 s[64:65], s[0:1], 72")
        self.e("s_waitcnt lgkmcnt(0)")
        self.e("s_mov_b64 exec, -1")
        self.e("s_and_b32 s66, s2, 63")
        self.e("s_cmp_lg_u32 s66, 5")
        self.e("s_cbranch_scc1 %s" % l)
        self.e("s_cmp_lg_u32 s3, 0")
        self.e("s_cbranch_scc1 %s" % l)
        self.e("s_lshr_b32 s66, s2, 6")
        self.e("s_lshl_b32 s66, s66, 6")
        self.e("s_and_b32 s65, s65, 0xffff")
        self.e("s_mov_b32 s66, s66")
        self.e("s_mov_b32 s62, s64")
        self.e("s_mov_b32 s63, s65")
        self.e("s_mov_b32 s60, s64")
        self.e("s_mov_b32 s61, s65")
        self.e("s_mov_b32 s62, 256")
        self.e("s_mov_b32 s63, 0x20000")
        self.e("v_mov_b32 v0, 0")
        for i in range(n + 1):
            self.e("s_sub_u32 s67, s%d, s70" % (70 + 2 * i))
            self.e("v_mov_b32 v1, s67")
            self.e("buffer_store_dword v1, v0, s[60:63], s66 offen offset:%d" % (4 * i))
            self.e("s_nop 1")
        self.label(l)

    def srd(self, d, base, nbytes, add=0):
        self.e("s_add_u32 s%d, s%d, 0x%x" % (d, base, add))
        self.e("s_addc_u32 s%d, s%d, 0" % (d + 1, base + 1))
        self.e("s_and_b32 s%d, s%d, 0xffff" % (d + 1, d + 1))
        self.e("s_mov_b32 s%d, 0x%x" % (d + 2, nbytes))
        self.e("s_mov_b32 s%d, 0x20000" % (d + 3))

    def srd_table(self, d, label, nbytes):
        l = self.newlabel("pc")
        self.e("s_getpc_b64 %s" % sp(d))
        self.label(l)
        self.e("s_add_u32 s%d, s%d, %s - %s" % (d, d, label, l))
        self.e("s_addc_u32 s%d, s%d, 0" % (d + 1, d + 1))
        self.e("s_and_b32 s%d, s%d, 0xffff" % (d + 1, d + 1))
        self.e("s_mov_b32 s%d, 0x%x" % (d + 2, nbytes))
        self.e("s_mov_b32 s%d, 0x20000" % (d + 3))

    def sconst2(self, d, val):
        self.e("s_mov_b32 s%d, 0x%08x" % (d, f2u(val)))
        self.e("s_mov_b32 s%d, 0x%08x" % (d + 1, f2u(val)))

    def cadd(self, d, a, b):
        self.e("v_pk_add_f32 %s, %s, %s" % (vp(d), vp(a), vp(b)))

    def csub(self, d, a, b):
        self.e("v_pk_add_f32 %s, %s, %s neg_lo:[0,1] neg_hi:[0,1]" % (vp(d), vp(a), vp(b)))

    def cadd_i(self, d, a, b, sign):
        if sign > 0:
            self.e("v_pk_add_f32 %s, %s, %s op_sel:[0,1] op_sel_hi:[1,0] neg_lo:[0,1]" % (vp(d), vp(a), vp(b)))
        else:
            self.e("v_pk_add_f32 %s, %s, %s op_sel:[0,1] op_sel_hi:[1,0] neg_hi:[0,1]" % (vp(d), vp(a), vp(b)))

    def cfma_s(self, d, a, s, c, neg=False):
        m = " neg_lo:[1,0,0] neg_hi:[1,0,0]" if neg else ""
        self.e("v_pk_fma_f32 %s, %s, %s, %s%s" % (vp(d), vp(a), sp(s), vp(c), m))

    def cmul_s(self, d, a, s):
        self.e("v_pk_mul_f32 %s, %s, %s" % (vp(d), vp(a), sp(s)))

    def cfma_si(self, d, a, s, c, sign):
        if sign > 0:
            m = "neg_lo:[1,0,0]"
        else:
            m = "neg_hi:[1,0,0]"
        self.e("v_pk_fma_f32 %s, %s, %s, %s op_sel:[1,0,0] op_sel_hi:[0,1,1] %s" % (vp(d), vp(a), sp(s), vp(c), m))

    def cmul(self, d, x, w, t, conj=False):
        self.e("v_pk_mul_f32 %s, %s, %s op_sel:[0,0] op_sel_hi:[1,0]" % (vp(t), vp(x), vp(w)))
        m = "neg_hi:[1,0,0]" if conj else "neg_lo:[1,0,0]"
        self.e("v_pk_fma_f32 %s, %s, %s, %s op_sel:[1,1,0] op_sel_hi:[0,1,1] %s" % (vp(d), vp(x), vp(w), vp(t), m))

    def fft8(self, X, T, sR, inv):
        sg = 1 if inv else -1
        for j in range(4):
            self.cadd(T[j], X[j], X[j + 4])
            self.csub(T[j + 4], X[j], X[j + 4])
        b0, b1, b2, b3, u5, u7, d0, d1 = X
        self.cadd(b0, T[0], T[2])
        self.csub(b1, T[0], T[2])
        self.cadd(b2, T[1], T[3])
        self.csub(b3, T[1], T[3])
        a5, a7 = T[5], T[7]
        if not inv:
            self.e("v_pk_add_f32 %s, %s, %s op_sel:[0,1] op_sel_hi:[1,0] neg_hi:[0,1]" % (vp(u5), vp(a5), vp(a5)))
            self.e("v_pk_add_f32 %s, %s, %s op_sel:[0,1] op_sel_hi:[1,0] neg_lo:[1,0] neg_hi:[1,1]" % (vp(u7), vp(a7), vp(a7)))
        else:
            self.e("v_pk_add_f32 %s, %s, %s op_sel:[0,1] op_sel_hi:[1,0] neg_lo:[0,1]" % (vp(u5), vp(a5), vp(a5)))
            self.e("v_pk_add_f32 %s, %s, %s op_sel:[0,1] op_sel_hi:[1,0] neg_lo:[1,1] neg_hi:[1,0]" % (vp(u7), vp(a7), vp(a7)))
        self.cadd_i(d0, T[4], T[6], sg)
        self.cadd_i(d1, T[4], T[6], -sg)
        d2u, d3u = T[5], T[7]
        self.cadd(d2u, u5, u7)
        self.csub(d3u, u5, u7)
        self.cadd(T[0], b0, b2)
        self.csub(T[4], b0, b2)
        self.cadd_i(T[2], b1, b3, sg)
        self.cadd_i(T[6], b1, b3, -sg)
        self.cfma_s(T[1], d2u, sR, d0)
        self.cfma_s(T[5], d2u, sR, d0, neg=True)
        self.cfma_si(T[3], d3u, sR, d1, sg)
        self.cfma_si(T[7], d3u, sR, d1, -sg)

    def fft4(self, X, T, inv):
        sg = 1 if inv else -1
        self.cadd(T[0], X[0], X[2])
        self.csub(T[1], X[0], X[2])
        self.cadd(T[2], X[1], X[3])
        self.csub(T[3], X[1], X[3])
        self.cadd(X[0], T[0], T[2])
        self.csub(X[2], T[0], T[2])
        self.cadd_i(X[1], T[1], T[3], sg)
        self.cadd_i(X[3], T[1], T[3], -sg)

    def dft5(self, Y, X, C, inv):
        sg = 1 if inv else -1
        t1, t2, t3, t4, s, a, b, c, d = X[:9]
        self.cadd(t1, Y[1], Y[4])
        self.cadd(t2, Y[2], Y[3])
        self.csub(t3, Y[1], Y[4])
        self.csub(t4, Y[2], Y[3])
        self.cfma_s(a, t1, C['c1'], Y[0])
        self.cfma_s(b, t1, C['c2'], Y[0])
        self.cmul_s(c, t3, C['s1'])
        self.cmul_s(d, t3, C['s2'])
        self.cadd(s, t1, t2)
        self.cfma_s(a, t2, C['c2'], a)
        self.cfma_s(b, t2, C['c1'], b)
        self.cfma_s(c, t4, C['s2'], c)
        self.cfma_s(d, t4, C['s1'], d, neg=True)
        self.cadd(Y[0], Y[0], s)
        self.cadd_i(Y[1], a, c, sg)
        self.cadd_i(Y[4], a, c, -sg)
        self.cadd_i(Y[2], b, d, sg)
        self.cadd_i(Y[3], b, d, -sg)

    def fft10(self, X, T, C, inv):
        for n2 in range(5):
            i0 = (2 * n2) % 10
            i1 = (5 + 2 * n2) % 10
            self.cadd(T[n2], X[i0], X[i1])
            self.csub(T[5 + n2], X[i0], X[i1])
        self.dft5(T[0:5], X, C, inv)
        self.dft5(T[5:10], X, C, inv)
        R = [None] * 10
        for k2 in range(5):
            R[(6 * k2) % 10] = T[k2]
            R[(5 + 6 * k2) % 10] = T[5 + k2]
        return R

    def consts5(self, base):
        C = {'c1': base, 'c2': base + 2, 's1': base + 4, 's2': base + 6}
        self.sconst2(C['c1'], math.cos(2 * math.pi / 5))
        self.sconst2(C['c2'], math.cos(4 * math.pi / 5))
        self.sconst2(C['s1'], math.sin(2 * math.pi / 5))
        self.sconst2(C['s2'], math.sin(4 * math.pi / 5))
        return C

    def allreduce2(self, a, b, ta, tb):
        for perm in ("quad_perm:[1,0,3,2]", "quad_perm:[2,3,0,1]", "row_half_mirror", "row_mirror"):
            self.nop(2)
            self.e("v_add_f32_dpp v%d, v%d, v%d %s row_mask:0xf bank_mask:0xf" % (a, a, a, perm))
            self.e("v_add_f32_dpp v%d, v%d, v%d %s row_mask:0xf bank_mask:0xf" % (b, b, b, perm))
        for sw in ("v_permlane16_swap_b32", "v_permlane32_swap_b32"):
            self.e("v_mov_b32 v%d, v%d" % (ta, a))
            self.e("v_mov_b32 v%d, v%d" % (tb, b))
            self.nop(2)
            self.e("%s v%d, v%d" % (sw, a, ta))
            self.e("%s v%d, v%d" % (sw, b, tb))
            self.nop(1)
            self.e("v_add_f32 v%d, v%d, v%d" % (a, a, ta))
            self.e("v_add_f32 v%d, v%d, v%d" % (b, b, tb))

    def div640(self, d, s, t, sInv, s640):
        self.e("v_mul_f32 v%d, s%d, v%d" % (d, sInv, s))
        self.e("v_fma_f32 v%d, -v%d, s%d, v%d" % (t, d, s640, s))
        self.e("v_fma_f32 v%d, v%d, s%d, v%d" % (d, t, sInv, d))

    def layernorm2(self, A, B, OUTP, tmp, sInv, s640, sEps):
        sa, sb, ta, tb, ma, mb, va, vb, ra, rb, p, d0, d1, e0 = tmp[:14]
        self.e("v_add_f32 v%d, v%d, v%d" % (sa, A[0], A[1]))
        self.e("v_add_f32 v%d, v%d, v%d" % (sb, B[0], B[1]))
        for j in range(2, 10):
            self.e("v_add_f32 v%d, v%d, v%d" % (sa, sa, A[j]))
            self.e("v_add_f32 v%d, v%d, v%d" % (sb, sb, B[j]))
        self.allreduce2(sa, sb, ta, tb)
        self.div640(ma, sa, ta, sInv, s640)
        self.div640(mb, sb, tb, sInv, s640)
        for j in range(10):
            self.e("v_sub_f32 v%d, v%d, v%d" % (d0, A[j], ma))
            self.e("v_sub_f32 v%d, v%d, v%d" % (d1, B[j], mb))
            if j == 0:
                self.e("v_mul_f32 v%d, v%d, v%d" % (sa, d0, d0))
                self.e("v_mul_f32 v%d, v%d, v%d" % (sb, d1, d1))
            else:
                self.e("v_fma_f32 v%d, v%d, v%d, v%d" % (sa, d0, d0, sa))
                self.e("v_fma_f32 v%d, v%d, v%d, v%d" % (sb, d1, d1, sb))
        self.allreduce2(sa, sb, ta, tb)
        self.div640(va, sa, ta, sInv, s640)
        self.div640(vb, sb, tb, sInv, s640)
        self.e("v_cvt_pk_bf16_f32 v%d, v%d, v%d" % (p, ma, mb))
        self.e("v_lshlrev_b32 v%d, 16, v%d" % (ma, p))
        self.e("v_and_b32 v%d, 0xffff0000, v%d" % (mb, p))
        self.e("v_cvt_pk_bf16_f32 v%d, v%d, v%d" % (p, va, vb))
        self.e("v_lshlrev_b32 v%d, 16, v%d" % (va, p))
        self.e("v_and_b32 v%d, 0xffff0000, v%d" % (vb, p))
        self.e("v_add_f32 v%d, s%d, v%d" % (va, sEps, va))
        self.e("v_add_f32 v%d, s%d, v%d" % (vb, sEps, vb))
        self.e("v_cvt_pk_bf16_f32 v%d, v%d, v%d" % (p, va, vb))
        self.e("v_lshlrev_b32 v%d, 16, v%d" % (va, p))
        self.e("v_and_b32 v%d, 0xffff0000, v%d" % (vb, p))
        self.e("v_sqrt_f32 v%d, v%d" % (va, va))
        self.e("v_sqrt_f32 v%d, v%d" % (vb, vb))
        self.nop(1)
        self.e("v_cvt_pk_bf16_f32 v%d, v%d, v%d" % (p, va, vb))
        self.e("v_lshlrev_b32 v%d, 16, v%d" % (va, p))
        self.e("v_and_b32 v%d, 0xffff0000, v%d" % (vb, p))
        self.e("v_rcp_f32 v%d, v%d" % (ra, va))
        self.e("v_rcp_f32 v%d, v%d" % (rb, vb))
        self.nop(1)
        for j in range(10):
            o = OUTP[j]
            self.e("v_sub_f32 v%d, v%d, v%d" % (d0, A[j], ma))
            self.e("v_sub_f32 v%d, v%d, v%d" % (d1, B[j], mb))
            self.e("v_cvt_pk_bf16_f32 v%d, v%d, v%d" % (p, d0, d1))
            self.e("v_lshlrev_b32 v%d, 16, v%d" % (d0, p))
            self.e("v_and_b32 v%d, 0xffff0000, v%d" % (d1, p))
            self.e("v_mul_f32 v%d, v%d, v%d" % (o, d0, ra))
            self.e("v_mul_f32 v%d, v%d, v%d" % (o + 1, d1, rb))
            self.e("v_fma_f32 v%d, -v%d, v%d, v%d" % (d0, o, va, d0))
            self.e("v_fma_f32 v%d, -v%d, v%d, v%d" % (d1, o + 1, vb, d1))
            self.e("v_fma_f32 v%d, v%d, v%d, v%d" % (o, d0, ra, o))
            self.e("v_fma_f32 v%d, v%d, v%d, v%d" % (o + 1, d1, rb, o + 1))
            self.e("v_cvt_pk_bf16_f32 v%d, v%d, v%d" % (p, o, o + 1))
            self.e("v_lshlrev_b32 v%d, 16, v%d" % (o, p))
            self.e("v_and_b32 v%d, 0xffff0000, v%d" % (o + 1, p))


def kernel_header(k, name):
    k.L.append(".p2align 8")
    k.L.append(".globl %s" % name)
    k.L.append(".type %s,@function" % name)
    k.label(name)


def kernel_desc(name, vgpr, sgpr=102):
    vg = (vgpr + 3) // 4 * 4
    return "\n".join([
        ".amdhsa_kernel %s" % name,
        "  .amdhsa_next_free_vgpr %d" % vgpr,
        "  .amdhsa_next_free_sgpr %d" % sgpr,
        "  .amdhsa_accum_offset %d" % vg,
        "  .amdhsa_group_segment_fixed_size 0",
        "  .amdhsa_kernarg_size 88",
        "  .amdhsa_user_sgpr_count 2",
        "  .amdhsa_user_sgpr_kernarg_segment_ptr 1",
        "  .amdhsa_system_sgpr_workgroup_id_x 1",
        ".end_amdhsa_kernel"])


R2 = 1.0 / math.sqrt(2.0)
P1 = 576
A2BASE = 40 * P1
P3 = 5120

def layernorm_pk(k, P, tmp, sC):
    e = k.e
    S, M, V, R, D, Q, TT, U = tmp[:8]
    e("v_pk_add_f32 %s, %s, %s" % (vp(S), vp(P[0]), vp(P[1])))
    for j in range(2, 10):
        e("v_pk_add_f32 %s, %s, %s" % (vp(S), vp(S), vp(P[j])))
    k.allreduce2(S, S + 1, TT, TT + 1)
    e("v_pk_mul_f32 %s, %s, %s" % (vp(M), vp(S), sp(sC['inv640'])))
    e("v_pk_fma_f32 %s, %s, %s, %s neg_lo:[1,0,0] neg_hi:[1,0,0]" % (vp(TT), vp(M), sp(sC['c640']), vp(S)))
    e("v_pk_fma_f32 %s, %s, %s, %s" % (vp(M), vp(TT), sp(sC['inv640']), vp(M)))
    for j in range(10):
        e("v_pk_add_f32 %s, %s, %s neg_lo:[0,1] neg_hi:[0,1]" % (vp(D), vp(P[j]), vp(M)))
        if j == 0:
            e("v_pk_mul_f32 %s, %s, %s" % (vp(S), vp(D), vp(D)))
        else:
            e("v_pk_fma_f32 %s, %s, %s, %s" % (vp(S), vp(D), vp(D), vp(S)))
    k.allreduce2(S, S + 1, TT, TT + 1)
    e("v_pk_mul_f32 %s, %s, %s" % (vp(V), vp(S), sp(sC['inv640'])))
    e("v_pk_fma_f32 %s, %s, %s, %s neg_lo:[1,0,0] neg_hi:[1,0,0]" % (vp(TT), vp(V), sp(sC['c640']), vp(S)))
    e("v_pk_fma_f32 %s, %s, %s, %s" % (vp(V), vp(TT), sp(sC['inv640']), vp(V)))

    def rnd(x):
        e("v_cvt_pk_bf16_f32 v%d, v%d, v%d" % (U, x, x + 1))
        e("v_lshlrev_b32 v%d, 16, v%d" % (x, U))
        e("v_and_b32 v%d, 0xffff0000, v%d" % (x + 1, U))
    rnd(M)
    rnd(V)
    e("v_pk_add_f32 %s, %s, %s" % (vp(V), vp(V), sp(sC['eps'])))
    rnd(V)
    e("v_sqrt_f32 v%d, v%d" % (V, V))
    e("v_sqrt_f32 v%d, v%d" % (V + 1, V + 1))
    k.nop(1)
    rnd(V)
    e("v_rcp_f32 v%d, v%d" % (R, V))
    e("v_rcp_f32 v%d, v%d" % (R + 1, V + 1))
    k.nop(1)
    for j in range(10):
        e("v_pk_add_f32 %s, %s, %s neg_lo:[0,1] neg_hi:[0,1]" % (vp(D), vp(P[j]), vp(M)))
        rnd(D)
        e("v_pk_mul_f32 %s, %s, %s" % (vp(Q), vp(D), vp(R)))
        e("v_pk_fma_f32 %s, %s, %s, %s neg_lo:[1,0,0] neg_hi:[1,0,0]" % (vp(D), vp(Q), vp(V), vp(D)))
        e("v_pk_fma_f32 %s, %s, %s, %s" % (vp(Q), vp(D), vp(R), vp(Q)))
        e("v_cvt_pk_bf16_f32 v%d, v%d, v%d" % (P[j], Q, Q + 1))


def ln_consts(k, base):
    sC = {'inv640': base, 'c640': base + 2, 'eps': base + 4}
    k.sconst2(sC['inv640'], 1.0 / 640.0)
    k.sconst2(sC['c640'], 640.0)
    k.sconst2(sC['eps'], 1e-5)
    return sC


K1_MAIN = 256
K1_HELP = 154


def gen_k1():
    k = K()
    kernel_header(k, "k1_kernel")
    k.rt_begin()
    e = k.e
    e("s_load_dwordx2 s[4:5], s[0:1], 0")
    e("s_load_dwordx4 s[8:11], s[0:1], 8")
    e("s_load_dwordx2 s[6:7], s[0:1], 80")
    e("v_lshrrev_b32 v2, 6, v0")
    e("v_and_b32 v1, 63, v0")
    e("s_nop 0")
    e("v_readfirstlane_b32 s3, v2")
    e("s_waitcnt lgkmcnt(0)")
    k.stamp(0)
    e("s_cmp_ge_u32 s2, %d" % K1_MAIN)
    e("s_cbranch_scc1 K1_helper")
    k.srd(12, 4, H_BYTES)
    k.srd(16, 6, X1_BYTES, WS_X1)
    k.srd_table(20, "tw640", 640 * 8)
    X = [10 + 2 * i for i in range(10)]
    T = [30 + 2 * i for i in range(10)]
    TW1 = [50 + 2 * i for i in range(9)]
    TW2 = [68 + 2 * i for i in range(7)]
    TMP = [82 + 2 * i for i in range(8)]
    e("v_lshrrev_b32 v3, 3, v0")
    e("v_and_b32 v4, 7, v0")
    e("s_cmp_ge_u32 s3, 4")
    e("s_cbranch_scc1 K1_ld_skip")
    e("s_lshl_b32 s37, s2, 3")
    e("s_lshl_b32 s38, s3, 1")
    e("s_add_u32 s37, s37, s38")
    e("s_mul_i32 s37, s37, 1280")
    e("v_lshlrev_b32 v5, 1, v1")
    for j in range(10):
        e("buffer_load_ushort v%d, v5, s[12:15], s37 offen offset:%d" % (X[j], j * 128))
        e("buffer_load_ushort v%d, v5, s[12:15], s37 offen offset:%d" % (X[j] + 1, 1280 + j * 128))
    e("v_lshlrev_b32 v5, 3, v1")
    for q1 in range(1, 10):
        e("v_mul_u32_u24 v6, %d, v5" % q1)
        e("buffer_load_dwordx2 %s, v6, s[20:23], 0 offen" % vp(TW1[q1 - 1]))
    k.label("K1_ld_skip")
    e("v_mul_u32_u24 v5, 80, v4")
    for q2 in range(1, 8):
        e("v_mul_u32_u24 v6, %d, v5" % q2)
        e("buffer_load_dwordx2 %s, v6, s[20:23], 0 offen" % vp(TW2[q2 - 1]))
    k.sconst2(24, R2)
    C5 = k.consts5(26)
    sC = ln_consts(k, 40)
    e("s_cmp_ge_u32 s3, 4")
    e("s_cbranch_scc1 K1_s1_done")
    e("s_waitcnt vmcnt(16)")
    k.stamp(1)
    for j in range(10):
        e("v_lshlrev_b32 v%d, 16, v%d" % (X[j], X[j]))
        e("v_lshlrev_b32 v%d, 16, v%d" % (X[j] + 1, X[j] + 1))
    layernorm_pk(k, X, TMP, sC)
    for j in range(10):
        e("v_and_b32 v%d, 0xffff0000, v%d" % (X[j] + 1, X[j]))
        e("v_lshlrev_b32 v%d, 16, v%d" % (X[j], X[j]))
    R = k.fft10(X, T, C5, False)
    e("s_waitcnt vmcnt(7)")
    k.stamp(2)
    e("s_mul_i32 s38, s3, %d" % (10 * P1))
    e("v_lshlrev_b32 v5, 3, v1")
    e("v_add_u32 v5, s38, v5")
    for q1 in range(10):
        if q1:
            k.cmul(R[q1], R[q1], TW1[q1 - 1], X[0])
        e("ds_write_b64 v5, %s offset:%d" % (vp(R[q1]), q1 * P1))
    k.label("K1_s1_done")
    e("s_waitcnt vmcnt(0) lgkmcnt(0)")
    e("s_barrier")
    k.stamp(3)
    X8 = X[:8]
    T8 = T[:8]
    e("v_mul_u32_u24 v5, %d, v3" % P1)
    e("v_lshl_add_u32 v5, v4, 3, v5")
    for j in range(8):
        e("ds_read_b64 %s, v5 offset:%d" % (vp(X8[j]), j * 64))
    e("s_waitcnt lgkmcnt(0)")
    k.fft8(X8, T8, 24, False)
    for q2 in range(8):
        if q2:
            k.cmul(T8[q2], T8[q2], TW2[q2 - 1], X8[0])
        e("ds_write_b64 v5, %s offset:%d" % (vp(T8[q2]), A2BASE + q2 * 64))
    e("s_waitcnt lgkmcnt(0)")
    e("s_barrier")
    k.stamp(4)
    e("v_mul_u32_u24 v5, %d, v3" % P1)
    e("v_lshl_add_u32 v5, v4, 6, v5")
    for j in range(4):
        e("ds_read_b128 %s, v5 offset:%d" % (vq(X8[2 * j]), A2BASE + j * 16))
    e("v_mul_u32_u24 v6, 205, v3")
    e("v_lshrrev_b32 v6, 11, v6")
    e("v_mul_u32_u24 v7, 10, v6")
    e("v_sub_u32 v7, v3, v7")
    e("v_mul_u32_u24 v8, 10, v4")
    e("v_add_u32 v7, v7, v8")
    e("v_lshlrev_b32 v7, 3, v7")
    e("v_mul_u32_u24 v6, %d, v6" % P3)
    e("v_add_u32 v7, v7, v6")
    e("s_waitcnt lgkmcnt(0)")
    k.fft8(X8, T8, 24, False)
    for q3 in range(8):
        e("ds_write_b64 v7, %s offset:%d" % (vp(T8[q3]), q3 * 640))
    e("v_sub_u32 v6, 640, v0")
    e("v_cmp_eq_u32 vcc, 0, v0")
    e("v_mov_b32 v8, 320")
    e("v_lshlrev_b32 v5, 3, v0")
    e("v_cndmask_b32 v6, v6, v8, vcc")
    e("v_lshlrev_b32 v6, 3, v6")
    e("v_lshlrev_b32 v7, 14, v0")
    e("s_lshl_b32 s37, s2, 6")
    e("s_waitcnt lgkmcnt(0)")
    e("s_barrier")
    k.stamp(5)
    for p in range(4):
        e("ds_read_b64 %s, v5 offset:%d" % (vp(X[2 * p]), p * P3))
        e("ds_read_b64 %s, v6 offset:%d" % (vp(X[2 * p + 1]), p * P3))
    e("s_waitcnt lgkmcnt(0)")
    for p in range(4):
        z, y = X[2 * p], X[2 * p + 1]
        o = T[2 * p]
        e("v_pk_add_f32 %s, %s, %s neg_hi:[0,1]" % (vp(o), vp(z), vp(y)))
        e("v_pk_add_f32 %s, %s, %s op_sel:[1,1] op_sel_hi:[0,0] neg_hi:[1,0]" % (vp(o + 2), vp(z), vp(y)))
    e("s_cmp_lg_u32 s3, 0")
    e("s_cbranch_scc1 K1_st")
    for p in range(4):
        z, y = X[2 * p], X[2 * p + 1]
        o = T[2 * p]
        s_ = TMP[0]
        e("v_pk_add_f32 %s, %s, %s" % (vp(s_), vp(z), vp(z)))
        e("v_cndmask_b32 v%d, v%d, v%d, vcc" % (o, o, s_))
        e("v_cndmask_b32 v%d, v%d, 0, vcc" % (o + 1, o + 1))
        e("v_cndmask_b32 v%d, v%d, v%d, vcc" % (o + 2, o + 2, s_ + 1))
        e("v_cndmask_b32 v%d, v%d, 0, vcc" % (o + 3, o + 3))
        q = 50 + 4 * p
        e("v_add_f32 v%d, v%d, v%d" % (q, y, y))
        e("v_mov_b32 v%d, 0" % (q + 1))
        e("v_add_f32 v%d, v%d, v%d" % (q + 2, y + 1, y + 1))
        e("v_mov_b32 v%d, 0" % (q + 3))
    e("v_mov_b32 v9, 0x%x" % (320 * 16384))
    e("s_and_saveexec_b64 s[46:47], vcc")
    for p in range(4):
        e("buffer_store_dwordx4 %s, v9, s[16:19], s37 offen offset:%d" % (vq(50 + 4 * p), p * 16))
    e("s_mov_b64 exec, s[46:47]")
    k.label("K1_st")
    for p in range(4):
        e("buffer_store_dwordx4 %s, v7, s[16:19], s37 offen offset:%d" % (vq(T[2 * p]), p * 16))
    k.stamp_flush(6)
    k.label("K1_end")
    k.rt_end(0)
    e("s_endpgm")
    k.label("K1_helper")
    e("s_sub_u32 s4, s2, %d" % K1_MAIN)
    e("s_mul_i32 s4, s4, 5")
    e("s_add_u32 s4, s4, s3")
    e("s_cmp_ge_u32 s4, 768")
    e("s_cbranch_scc1 K1_end")
    k.srd(12, 8, 2048 * 321 * 2)
    k.srd(16, 10, 2048 * 321 * 2)
    k.srd(20, 6, WT_BYTES, WS_WT)
    e("s_and_b32 s5, s4, 127")
    e("s_lshr_b32 s24, s4, 7")
    e("s_lshr_b32 s25, s5, 4")
    e("s_lshr_b32 s26, s5, 1")
    e("s_and_b32 s26, s26, 7")
    e("s_lshl_b32 s26, s26, 3")
    e("s_add_u32 s25, s25, s26")
    e("s_and_b32 s26, s5, 1")
    e("s_lshl_b32 s26, s26, 8")
    e("s_add_u32 s25, s25, s26")
    e("s_mul_i32 s25, s25, 642")
    e("s_lshl_b32 s27, s24, 6")
    e("v_add_u32 v2, s27, v1")
    e("v_lshlrev_b32 v3, 1, v2")
    e("v_lshlrev_b32 v4, 13, v2")
    e("s_lshl_b32 s28, s5, 6")
    e("v_cmp_gt_u32 vcc, 321, v2")
    e("s_and_saveexec_b64 s[40:41], vcc")
    e("s_cbranch_execz K1_end")
    for q3 in range(4):
        for q4 in range(4):
            i = q3 * 4 + q4
            e("s_add_u32 s29, s25, %d" % ((64 * q3 + 512 * q4) * 642))
            e("buffer_load_ushort v%d, v3, s[12:15], s29 offen" % (10 + i))
            e("buffer_load_ushort v%d, v3, s[16:19], s29 offen" % (26 + i))
    e("s_waitcnt vmcnt(0)")
    for i in range(16):
        e("v_lshl_or_b32 v%d, v%d, 16, v%d" % (10 + i, 26 + i, 10 + i))
    for i in range(4):
        e("buffer_store_dwordx4 %s, v4, s[20:23], s28 offen offset:%d" % (vq(10 + 4 * i), i * 16))
    k.rt_end(0)
    e("s_endpgm")
    return k, 100


K2_MAIN = 321
K2_HELP = 240
E1B = 0
E2B = 16384
E3B = E2B + 64 * 288
K2_LDS = E3B + 64 * 288


def wprep_variant(k, which):
    e = k.e
    if which == 1:
        pitch, per, srcofs, dst = 3072, 10, 32, WS_W1F
    else:
        pitch, per, srcofs, dst = 1280, 12, 48, WS_W2F
    e("s_load_dwordx2 s[8:9], s[0:1], %d" % srcofs)
    magic = (1 << 20) // per + 1
    e("s_mul_i32 s5, s4, %d" % magic)
    e("s_lshr_b32 s5, s5, 20")
    e("s_mul_i32 s24, s5, %d" % per)
    e("s_sub_u32 s24, s4, s24")
    e("s_waitcnt lgkmcnt(0)")
    k.srd(12, 8, WF_BYTES)
    k.srd(16, 6, WF_BYTES, dst)
    e("v_lshlrev_b32 v4, 4, v1")
    if which == 1:
        e("v_lshrrev_b32 v2, 5, v1")
        e("v_and_b32 v3, 31, v1")
        e("v_mul_u32_u24 v2, %d, v2" % (8 * pitch))
        e("v_lshl_add_u32 v2, v3, 1, v2")
        e("s_lshl_b32 s25, s5, 6")
        e("s_mul_i32 s26, s24, %d" % (64 * pitch))
        e("s_add_u32 s25, s25, s26")
        e("s_mul_i32 s27, s5, %d" % (40 * 1024))
        e("s_lshl_b32 s26, s24, 12")
        e("s_add_u32 s27, s27, s26")
        kper, dstep = 16, 1024
        joff = lambda j: j
    else:
        e("v_lshrrev_b32 v2, 5, v1")
        e("v_lshrrev_b32 v3, 4, v1")
        e("v_and_b32 v3, 1, v3")
        e("v_lshl_add_u32 v2, v2, 2, v3")
        e("v_mul_u32_u24 v2, %d, v2" % (4 * pitch))
        e("v_and_b32 v3, 15, v1")
        e("v_lshl_add_u32 v2, v3, 1, v2")
        e("s_lshl_b32 s25, s5, 5")
        e("s_mul_i32 s26, s24, %d" % (128 * pitch))
        e("s_add_u32 s25, s25, s26")
        e("s_mul_i32 s26, s5, 52429")
        e("s_lshr_b32 s26, s26, 18")
        e("s_mul_i32 s27, s26, 5")
        e("s_sub_u32 s27, s5, s27")
        e("s_mul_i32 s26, s26, 240")
        e("s_add_u32 s27, s27, s26")
        e("s_mul_i32 s26, s24, 20")
        e("s_add_u32 s27, s27, s26")
        e("s_lshl_b32 s27, s27, 10")
        kper, dstep = 32, 5120
        joff = lambda j: 8 * (j >> 2) + (j & 3)
    for sl in range(4):
        for j in range(8):
            e("s_add_u32 s28, s25, %d" % ((kper * sl + joff(j)) * pitch))
            e("buffer_load_ushort v%d, v2, s[12:15], s28 offen" % (10 + sl * 8 + j))
    e("s_waitcnt vmcnt(0)")
    for sl in range(4):
        for jj in range(4):
            e("v_lshl_or_b32 v%d, v%d, 16, v%d" % (50 + sl * 4 + jj, 10 + sl * 8 + 2 * jj + 1, 10 + sl * 8 + 2 * jj))
    for sl in range(4):
        e("buffer_store_dwordx4 %s, v4, s[16:19], s27 offen" % vq(50 + sl * 4))
        if sl < 3:
            e("s_add_u32 s27, s27, %d" % dstep)
    k.rt_end(1)
    e("s_endpgm")


def gen_k2():
    k = K()
    kernel_header(k, "k2_kernel")
    k.rt_begin()
    e = k.e
    e("s_load_dwordx2 s[6:7], s[0:1], 80")
    e("v_lshrrev_b32 v2, 6, v0")
    e("v_and_b32 v1, 63, v0")
    e("s_nop 0")
    e("v_readfirstlane_b32 s3, v2")
    e("s_waitcnt lgkmcnt(0)")
    k.stamp(0)
    e("s_cmp_ge_u32 s2, %d" % K2_MAIN)
    e("s_cbranch_scc1 K2_helper")
    k.srd(12, 6, X1_BYTES, WS_X1)
    k.srd(16, 6, WT_BYTES, WS_WT)
    k.srd_table(20, "tw2048", 2048 * 8)
    X = [10 + 2 * i for i in range(8)]
    T = [26 + 2 * i for i in range(8)]
    TW1 = [42 + 2 * i for i in range(7)]
    TW2 = [56 + 2 * i for i in range(7)]
    TW3 = [70 + 2 * i for i in range(7)]
    WV = 84
    e("s_lshl_b32 s28, s2, 14")
    e("v_lshlrev_b32 v5, 3, v0")
    for j in range(8):
        k.vm("buffer_load_dwordx2 %s, v5, s[12:15], s28 offen offset:%d" % (vp(X[j]), (j * 2048) % 4096), "x")
        if j % 2 == 1 and j < 7:
            e("s_add_u32 s28, s28, 4096")
    for q in range(1, 8):
        e("v_mul_u32_u24 v6, %d, v5" % q)
        k.vm("buffer_load_dwordx2 %s, v6, s[20:23], 0 offen" % vp(TW1[q - 1]), "tw1")
    e("v_and_b32 v3, 31, v0")
    e("v_lshlrev_b32 v7, 6, v3")
    for q in range(1, 8):
        e("v_mul_u32_u24 v6, %d, v7" % q)
        k.vm("buffer_load_dwordx2 %s, v6, s[20:23], 0 offen" % vp(TW2[q - 1]), "tw2")
    e("v_and_b32 v4, 3, v0")
    e("v_lshlrev_b32 v7, 9, v4")
    for q in range(1, 8):
        e("v_mul_u32_u24 v6, %d, v7" % q)
        k.vm("buffer_load_dwordx2 %s, v6, s[20:23], 0 offen" % vp(TW3[q - 1]), "tw3")
    e("s_lshl_b32 s29, s2, 13")
    e("v_lshlrev_b32 v6, 5, v0")
    k.vm("buffer_load_dwordx4 %s, v6, s[16:19], s29 offen" % vq(WV), "w")
    k.vm("buffer_load_dwordx4 %s, v6, s[16:19], s29 offen offset:16" % vq(WV + 4), "w")
    k.sconst2(24, R2)
    k.sconst2(26, 1.0 / (2.0 * 2048 * 640))
    e("v_lshrrev_b32 v6, 5, v0")
    e("v_lshlrev_b32 v6, 11, v6")
    e("v_lshl_add_u32 v6, v3, 3, v6")
    e("v_lshrrev_b32 v7, 5, v0")
    e("v_mul_u32_u24 v7, 2304, v7")
    e("v_lshl_add_u32 v7, v3, 3, v7")
    e("v_lshrrev_b32 v8, 2, v0")
    e("v_mul_u32_u24 v8, 288, v8")
    e("v_lshl_add_u32 v9, v4, 6, v8")
    e("v_lshl_add_u32 v8, v4, 3, v8")
    k.vmwait("x")
    k.stamp(1)
    k.fft8(X, T, 24, False)
    k.vmwait("tw1")
    k.stamp(2)
    for q in range(8):
        if q:
            k.cmul(T[q], T[q], TW1[q - 1], X[0])
        e("ds_write_b64 v5, %s offset:%d" % (vp(T[q]), E1B + q * 2048))
    e("s_waitcnt lgkmcnt(0)")
    e("s_barrier")
    k.stamp(3)
    for j in range(8):
        e("ds_read_b64 %s, v6 offset:%d" % (vp(X[j]), E1B + j * 256))
    e("s_waitcnt lgkmcnt(0)")
    k.fft8(X, T, 24, False)
    k.vmwait("tw2")
    for q in range(8):
        if q:
            k.cmul(T[q], T[q], TW2[q - 1], X[0])
        e("ds_write_b64 v7, %s offset:%d" % (vp(T[q]), E2B + q * 288))
    e("s_waitcnt lgkmcnt(0)")
    e("s_barrier")
    k.stamp(4)
    for j in range(8):
        e("ds_read_b64 %s, v8 offset:%d" % (vp(X[j]), E2B + j * 32))
    e("s_waitcnt lgkmcnt(0)")
    k.fft8(X, T, 24, False)
    k.vmwait("tw3")
    for q in range(8):
        if q:
            k.cmul(T[q], T[q], TW3[q - 1], X[0])
        e("ds_write_b64 v8, %s offset:%d" % (vp(T[q]), E3B + q * 32))
    k.vmwait("w")
    WS_ = [TW3[0] + 100 + 2 * i for i in range(8)]
    for i in range(8):
        w = WS_[i]
        e("v_lshlrev_b32 v%d, 16, v%d" % (w, WV + i))
        e("v_and_b32 v%d, 0xffff0000, v%d" % (w + 1, WV + i))
        k.cmul_s(w, w, 26)
    e("s_waitcnt lgkmcnt(0)")
    e("s_barrier")
    k.stamp(5)
    for j in range(4):
        e("ds_read_b128 %s, v9 offset:%d" % (vq(X[2 * j]), E3B + j * 16))
    e("s_waitcnt lgkmcnt(0)")
    k.fft4(X[0:4], T[0:4], False)
    k.fft4(X[4:8], T[4:8], False)
    for i in range(8):
        k.cmul(X[i], X[i], WS_[i], T[i % 4])
    k.fft4(X[0:4], T[0:4], True)
    k.fft4(X[4:8], T[4:8], True)
    for j in range(4):
        e("ds_write_b128 v9, %s offset:%d" % (vq(X[2 * j]), E3B + j * 16))
    e("s_waitcnt lgkmcnt(0)")
    e("s_barrier")
    k.stamp(6)
    for q in range(8):
        e("ds_read_b64 %s, v8 offset:%d" % (vp(X[q]), E3B + q * 32))
    e("s_waitcnt lgkmcnt(0)")
    for q in range(1, 8):
        k.cmul(X[q], X[q], TW3[q - 1], T[q], conj=True)
    k.fft8(X, T, 24, True)
    for j in range(8):
        e("ds_write_b64 v8, %s offset:%d" % (vp(T[j]), E2B + j * 32))
    e("s_waitcnt lgkmcnt(0)")
    e("s_barrier")
    k.stamp(7)
    for q in range(8):
        e("ds_read_b64 %s, v7 offset:%d" % (vp(X[q]), E2B + q * 288))
    e("s_waitcnt lgkmcnt(0)")
    for q in range(1, 8):
        k.cmul(X[q], X[q], TW2[q - 1], T[q], conj=True)
    k.fft8(X, T, 24, True)
    for j in range(8):
        e("ds_write_b64 v6, %s offset:%d" % (vp(T[j]), E1B + j * 256))
    e("s_waitcnt lgkmcnt(0)")
    e("s_barrier")
    k.stamp(8)
    for q in range(8):
        e("ds_read_b64 %s, v5 offset:%d" % (vp(X[q]), E1B + q * 2048))
    e("s_waitcnt lgkmcnt(0)")
    for q in range(1, 8):
        k.cmul(X[q], X[q], TW1[q - 1], T[q], conj=True)
    k.fft8(X, T, 24, True)
    e("s_lshl_b32 s28, s2, 14")
    for j in range(8):
        e("buffer_store_dwordx2 %s, v5, s[12:15], s28 offen offset:%d" % (vp(T[j]), (j * 2048) % 4096))
        if j % 2 == 1 and j < 7:
            e("s_add_u32 s28, s28, 4096")
    k.stamp_flush(9)
    k.label("K2_end")
    k.rt_end(1)
    e("s_endpgm")
    k.label("K2_helper")
    e("s_sub_u32 s4, s2, %d" % K2_MAIN)
    e("s_lshl_b32 s4, s4, 2")
    e("s_add_u32 s4, s4, s3")
    e("s_cmp_ge_u32 s4, 960")
    e("s_cbranch_scc1 K2_end")
    e("s_cmp_ge_u32 s4, 480")
    e("s_cbranch_scc1 K2_helper2")
    wprep_variant(k, 1)
    k.label("K2_helper2")
    e("s_sub_u32 s4, s4, 480")
    wprep_variant(k, 2)
    return k, 188


def gen_k3():
    k = K()
    kernel_header(k, "k3_kernel")
    k.rt_begin()
    e = k.e
    e("s_load_dwordx2 s[4:5], s[0:1], 0")
    e("s_load_dwordx2 s[6:7], s[0:1], 80")
    e("v_lshrrev_b32 v2, 6, v0")
    e("v_and_b32 v1, 63, v0")
    e("s_nop 0")
    e("v_readfirstlane_b32 s3, v2")
    e("s_waitcnt lgkmcnt(0)")
    k.stamp(0)
    e("s_cmp_ge_u32 s2, 256")
    e("s_cbranch_scc1 K3_end")
    k.srd(12, 4, H_BYTES)
    k.srd(16, 6, X1_BYTES, WS_X1)
    k.srd_table(20, "tw640", 640 * 8)
    X = [10 + 2 * i for i in range(10)]
    T = [30 + 2 * i for i in range(10)]
    TW1 = [50 + 2 * i for i in range(9)]
    TW2 = [68 + 2 * i for i in range(7)]
    TMP = [82 + 2 * i for i in range(8)]
    XR = [100 + 2 * i for i in range(10)]
    E320 = 120
    e("v_lshrrev_b32 v3, 3, v0")
    e("v_and_b32 v4, 7, v0")
    e("s_lshl_b32 s37, s2, 6")
    e("v_lshlrev_b32 v7, 14, v0")
    for p in range(4):
        e("buffer_load_dwordx4 %s, v7, s[16:19], s37 offen offset:%d" % (vq(X[2 * p]), p * 16))
    e("v_cmp_eq_u32 vcc, 0, v0")
    e("v_mov_b32 v9, 0x%x" % (320 * 16384))
    e("s_cmp_lg_u32 s3, 0")
    e("s_cbranch_scc1 K3_no320")
    e("s_and_saveexec_b64 s[34:35], vcc")
    for p in range(4):
        e("buffer_load_dwordx4 %s, v9, s[16:19], s37 offen offset:%d" % (vq(E320 + 4 * p), p * 16))
    e("s_mov_b64 exec, s[34:35]")
    k.label("K3_no320")
    e("v_mul_u32_u24 v5, 80, v4")
    for n1 in range(1, 8):
        e("v_mul_u32_u24 v6, %d, v5" % n1)
        e("buffer_load_dwordx2 %s, v6, s[20:23], 0 offen" % vp(TW2[n1 - 1]))
    e("s_cmp_ge_u32 s3, 4")
    e("s_cbranch_scc1 K3_pre_done")
    e("s_lshl_b32 s38, s2, 3")
    e("s_lshl_b32 s39, s3, 1")
    e("s_add_u32 s39, s38, s39")
    e("s_mul_i32 s38, s39, 1280")
    e("v_lshlrev_b32 v5, 1, v1")
    for j in range(10):
        e("buffer_load_ushort v%d, v5, s[12:15], s38 offen offset:%d" % (XR[j], j * 128))
        e("buffer_load_ushort v%d, v5, s[12:15], s38 offen offset:%d" % (XR[j] + 1, 1280 + j * 128))
    e("v_lshlrev_b32 v5, 3, v1")
    for q1 in range(1, 10):
        e("v_mul_u32_u24 v6, %d, v5" % q1)
        e("buffer_load_dwordx2 %s, v6, s[20:23], 0 offen" % vp(TW1[q1 - 1]))
    k.label("K3_pre_done")
    k.srd(44, 6, H_BYTES, WS_H)
    k.srd(48, 6, H_BYTES, WS_LN2F)
    k.sconst2(24, R2)
    C5 = k.consts5(26)
    sC = ln_consts(k, 52)
    e("v_sub_u32 v6, 640, v0")
    e("v_lshlrev_b32 v5, 3, v0")
    e("v_cndmask_b32 v6, v6, 0, vcc")
    e("v_lshlrev_b32 v6, 3, v6")
    e("s_cmp_ge_u32 s3, 4")
    e("s_cbranch_scc1 K3_w4")
    e("s_waitcnt vmcnt(36)")
    e("s_branch K3_wj")
    k.label("K3_w4")
    e("s_waitcnt vmcnt(7)")
    k.label("K3_wj")
    k.stamp(1)
    for p in range(4):
        a, b = X[2 * p], X[2 * p + 1]
        e("v_cndmask_b32 v%d, v%d, 0, vcc" % (a + 1, a + 1))
        e("v_cndmask_b32 v%d, v%d, 0, vcc" % (b + 1, b + 1))
        e("v_pk_add_f32 %s, %s, %s op_sel:[0,1] op_sel_hi:[1,0] neg_lo:[0,1]" % (vp(T[2 * p]), vp(a), vp(b)))
        e("v_pk_add_f32 %s, %s, %s op_sel:[0,1] op_sel_hi:[1,0] neg_hi:[1,0]" % (vp(T[2 * p + 1]), vp(a), vp(b)))
        e("ds_write_b64 v6, %s offset:%d" % (vp(T[2 * p + 1]), p * P3))
        e("ds_write_b64 v5, %s offset:%d" % (vp(T[2 * p]), p * P3))
    e("s_cmp_lg_u32 s3, 0")
    e("s_cbranch_scc1 K3_no320b")
    e("v_mov_b32 v9, %d" % (320 * 8))
    e("s_and_saveexec_b64 s[34:35], vcc")
    for p in range(4):
        q = E320 + 4 * p
        e("v_mov_b32 v%d, v%d" % (q + 1, q + 2))
        e("ds_write_b64 v9, %s offset:%d" % (vp(q), p * P3))
    e("s_mov_b64 exec, s[34:35]")
    k.label("K3_no320b")
    X8 = X[:8]
    T8 = T[:8]
    e("v_mul_u32_u24 v6, 205, v3")
    e("v_lshrrev_b32 v6, 11, v6")
    e("v_mul_u32_u24 v7, 10, v6")
    e("v_sub_u32 v7, v3, v7")
    e("v_mul_u32_u24 v8, 10, v4")
    e("v_add_u32 v7, v7, v8")
    e("v_lshlrev_b32 v7, 3, v7")
    e("v_mul_u32_u24 v6, %d, v6" % P3)
    e("v_add_u32 v7, v7, v6")
    e("v_mul_u32_u24 v5, %d, v3" % P1)
    e("v_lshl_add_u32 v6, v4, 6, v5")
    e("v_lshl_add_u32 v5, v4, 3, v5")
    e("s_waitcnt lgkmcnt(0)")
    e("s_barrier")
    k.stamp(2)
    for q3 in range(8):
        e("ds_read_b64 %s, v7 offset:%d" % (vp(X8[q3]), q3 * 640))
    e("s_waitcnt lgkmcnt(0)")
    k.fft8(X8, T8, 24, True)
    e("s_cmp_ge_u32 s3, 4")
    e("s_cbranch_scc1 K3_w4b")
    e("s_waitcnt vmcnt(29)")
    e("s_branch K3_wjb")
    k.label("K3_w4b")
    e("s_waitcnt vmcnt(0)")
    k.label("K3_wjb")
    for n1 in range(1, 8):
        k.cmul(T8[n1], T8[n1], TW2[n1 - 1], X8[n1], conj=True)
    for j in range(4):
        e("ds_write_b128 v6, %s offset:%d" % (vq(T8[2 * j]), A2BASE + j * 16))
    e("s_waitcnt lgkmcnt(0)")
    e("s_barrier")
    k.stamp(3)
    for q2 in range(8):
        e("ds_read_b64 %s, v5 offset:%d" % (vp(X8[q2]), A2BASE + q2 * 64))
    e("s_waitcnt lgkmcnt(0)")
    k.fft8(X8, T8, 24, True)
    for j in range(8):
        e("ds_write_b64 v5, %s offset:%d" % (vp(T8[j]), j * 64))
    e("s_waitcnt lgkmcnt(0)")
    e("s_barrier")
    k.stamp(4)
    e("s_cmp_ge_u32 s3, 4")
    e("s_cbranch_scc1 K3_end")
    e("s_mul_i32 s40, s3, %d" % (10 * P1))
    e("v_lshlrev_b32 v5, 3, v1")
    e("v_add_u32 v5, s40, v5")
    for q1 in range(10):
        e("ds_read_b64 %s, v5 offset:%d" % (vp(X[q1]), q1 * P1))
    e("s_waitcnt vmcnt(0) lgkmcnt(0)")
    for q1 in range(1, 10):
        k.cmul(X[q1], X[q1], TW1[q1 - 1], T[q1], conj=True)
    R = k.fft10(X, T, C5, True)
    U = TMP[7]
    e("v_lshlrev_b32 v5, 2, v1")
    e("s_lshr_b32 s40, s39, 1")
    e("s_mul_i32 s40, s40, 2560")
    for j in range(10):
        y = R[j]
        h = XR[j]
        e("v_cvt_pk_bf16_f32 v%d, v%d, v%d" % (U, y, y + 1))
        e("v_lshlrev_b32 v%d, 16, v%d" % (h, h))
        e("v_lshlrev_b32 v%d, 16, v%d" % (h + 1, h + 1))
        e("v_lshlrev_b32 v%d, 16, v%d" % (y, U))
        e("v_and_b32 v%d, 0xffff0000, v%d" % (y + 1, U))
        e("v_pk_add_f32 %s, %s, %s" % (vp(h), vp(h), vp(y)))
        e("v_cvt_pk_bf16_f32 v%d, v%d, v%d" % (y, h, h + 1))
        e("v_lshlrev_b32 v%d, 16, v%d" % (h, y))
        e("v_and_b32 v%d, 0xffff0000, v%d" % (h + 1, y))
        e("buffer_store_dword v%d, v5, s[44:47], s40 offen offset:%d" % (y, j * 256))
    layernorm_pk(k, XR, TMP, sC)
    e("v_lshrrev_b32 v6, 4, v1")
    e("v_lshlrev_b32 v6, 10, v6")
    e("v_lshrrev_b32 v7, 3, v1")
    e("v_and_b32 v7, 1, v7")
    e("v_lshl_add_u32 v6, v7, 9, v6")
    e("v_and_b32 v7, 7, v1")
    e("v_lshl_add_u32 v6, v7, 1, v6")
    e("s_lshr_b32 s40, s39, 5")
    e("s_mul_i32 s40, s40, 40960")
    e("s_and_b32 s41, s39, 31")
    e("s_lshl_b32 s41, s41, 4")
    e("s_add_u32 s40, s40, s41")
    for j in range(10):
        o = XR[j]
        e("buffer_store_short v%d, v6, s[48:51], s40 offen" % o)
        e("buffer_store_short_d16_hi v%d, v6, s[48:51], s40 offen offset:16" % o)
        if j < 9:
            e("s_add_u32 s40, s40, 4096")
    k.stamp_flush(5)
    k.label("K3_end")
    k.rt_end(2)
    e("s_endpgm")
    return k, 136


K4_LDS = 3 * 40960


def epi_pair_relu2(k, a0, a1, bias, t0, t1, p, dst):
    e = k.e
    e("v_cvt_pk_bf16_f32 v%d, v%d, v%d" % (p, a0, a1))
    e("v_lshlrev_b32 v%d, 16, v%d" % (a0, p))
    e("v_and_b32 v%d, 0xffff0000, v%d" % (a1, p))
    e("v_lshlrev_b32 v%d, 16, v%d" % (t0, bias))
    e("v_and_b32 v%d, 0xffff0000, v%d" % (t1, bias))
    e("v_pk_add_f32 %s, %s, %s" % (vp(a0), vp(a0), vp(t0)))
    e("v_cvt_pk_bf16_f32 v%d, v%d, v%d" % (p, a0, a1))
    e("v_lshlrev_b32 v%d, 16, v%d" % (a0, p))
    e("v_and_b32 v%d, 0xffff0000, v%d" % (a1, p))
    e("v_max_f32 v%d, 0, v%d" % (a0, a0))
    e("v_max_f32 v%d, 0, v%d" % (a1, a1))
    e("v_pk_mul_f32 %s, %s, %s" % (vp(a0), vp(a0), vp(a0)))
    e("v_cvt_pk_bf16_f32 v%d, v%d, v%d" % (dst, a0, a1))


def gen_k4():
    k = K()
    kernel_header(k, "k4_kernel")
    k.rt_begin()
    e = k.e
    e("s_load_dwordx2 s[4:5], s[0:1], 40")
    e("s_load_dwordx2 s[6:7], s[0:1], 80")
    e("v_lshrrev_b32 v2, 6, v0")
    e("v_and_b32 v1, 63, v0")
    e("s_nop 0")
    e("v_readfirstlane_b32 s3, v2")
    e("s_waitcnt lgkmcnt(0)")
    k.stamp(0)
    e("s_cmp_ge_u32 s2, 256")
    e("s_cbranch_scc1 K4_end")
    k.srd(12, 6, H_BYTES, WS_LN2F)
    k.srd(16, 6, WF_BYTES, WS_W1F)
    e("s_and_b32 s8, s2, 3")
    e("s_lshl_b32 s8, s8, 2")
    e("s_lshr_b32 s9, s2, 3")
    e("s_and_b32 s10, s9, 3")
    e("s_add_u32 s8, s8, s10")
    e("s_lshr_b32 s9, s9, 2")
    e("s_lshr_b32 s10, s2, 2")
    e("s_and_b32 s10, s10, 1")
    e("s_lshl_b32 s10, s10, 3")
    e("s_add_u32 s9, s9, s10")
    e("s_lshl_b32 s8, s8, 2")
    e("s_add_u32 s8, s8, s3")
    e("s_mul_i32 s10, s8, 40960")
    e("s_mul_i32 s11, s9, %d" % (3 * 40960))
    e("s_lshl_b32 s28, s3, 11")
    e("v_lshlrev_b32 v2, 4, v1")
    ACC = 16
    BF = 64
    AB = [224, 236]

    def issue_chunk(c):
        for i in range(3):
            e("s_add_u32 s29, s28, %d" % (i * 40960 + c * 8192))
            e("s_add_u32 s30, s29, s11")
            e("s_mov_b32 m0, s29")
            e("s_nop 0")
            k.vm("buffer_load_dwordx4 v2, s[16:19], s30 offen lds", "c%d" % c)
            k.vm("buffer_load_dwordx4 v2, s[16:19], s30 offen offset:1024 lds", "c%d" % c)
        for s in range(8):
            if s % 4 == 0:
                e("s_add_u32 s31, s10, %d" % ((8 * c + s) * 1024))
            k.vm("buffer_load_dwordx4 %s, v2, s[12:15], s31 offen offset:%d" % (vq(BF + (8 * c + s) * 4), (s % 4) * 1024), "c%d" % c)

    def areads(slab, buf):
        for i in range(3):
            e("ds_read_b128 %s, v%d offset:%d" % (vq(AB[buf] + 4 * i), 2 + i, slab * 1024))

    for c in range(4):
        issue_chunk(c)
    k.srd(20, 6, HF_BYTES, WS_HF)
    k.srd(24, 4, 3072)
    e("v_add_u32 v3, 40960, v2")
    e("v_add_u32 v4, 81920, v2")
    for i in range(48):
        e("v_mov_b32 v%d, 0" % (ACC + i))
    for c in range(5):
        k.vmwait("c%d" % c)
        e("s_barrier")
        if c in (0, 1, 2, 4):
            k.stamp(1 + (0, 1, 2, 0, 3)[c])
        if c == 0:
            issue_chunk(4)
        if c == 1:
            e("v_lshrrev_b32 v5, 5, v1")
            e("v_lshlrev_b32 v5, 3, v5")
            e("s_mul_i32 s32, s9, 192")
            for i in range(3):
                for g in range(4):
                    k.vm("buffer_load_dwordx2 %s, v5, s[24:27], s32 offen offset:%d" % (vp(BF + (i * 4 + g) * 2), i * 64 + g * 16), "bias")
        areads(8 * c, 0)
        for s in range(8):
            slab = 8 * c + s
            buf = s % 2
            if s < 7:
                areads(slab + 1, 1 - buf)
                e("s_waitcnt lgkmcnt(3)")
            else:
                e("s_waitcnt lgkmcnt(0)")
            for i in range(3):
                e("v_mfma_f32_32x32x16_bf16 v[%d:%d], %s, %s, v[%d:%d]" % (
                    ACC + 16 * i, ACC + 16 * i + 15, vq(AB[buf] + 4 * i), vq(BF + slab * 4), ACC + 16 * i, ACC + 16 * i + 15))
    e("v_lshrrev_b32 v9, 4, v1")
    e("v_and_b32 v9, 1, v9")
    e("v_mul_u32_u24 v9, 49152, v9")
    e("v_and_b32 v10, 15, v1")
    e("v_lshl_add_u32 v9, v10, 4, v9")
    e("v_lshrrev_b32 v10, 5, v1")
    e("v_lshl_add_u32 v9, v10, 8, v9")
    e("s_mul_i32 s32, s8, 96")
    e("s_mul_i32 s33, s9, 3")
    e("s_add_u32 s32, s32, s33")
    e("s_lshl_b32 s32, s32, 10")
    k.vmwait("bias")
    k.stamp(5)
    k.nop(16)
    PK = 100
    for i in range(3):
        for gp in range(2):
            for g in (2 * gp, 2 * gp + 1):
                for hp in range(2):
                    a = ACC + 16 * i + 4 * g + 2 * hp
                    epi_pair_relu2(k, a, a + 1, BF + (i * 4 + g) * 2 + hp, 6, 7, 8, PK + i * 8 + g * 2 + hp)
            e("buffer_store_dwordx4 %s, v9, s[20:23], s32 offen offset:%d" % (vq(PK + i * 8 + gp * 4), i * 1024 + gp * 512))
    k.stamp_flush(6)
    k.label("K4_end")
    k.rt_end(3)
    e("s_endpgm")
    return k, 248


K5_SLOTS = 6
K5_LDS = K5_SLOTS * 20480


def gen_k5():
    k = K()
    kernel_header(k, "k5_kernel")
    k.rt_begin()
    e = k.e
    e("s_load_dwordx4 s[4:7], s[0:1], 56")
    e("s_load_dwordx2 s[8:9], s[0:1], 80")
    e("v_lshrrev_b32 v2, 6, v0")
    e("v_and_b32 v1, 63, v0")
    e("s_nop 0")
    e("v_readfirstlane_b32 s3, v2")
    e("s_waitcnt lgkmcnt(0)")
    k.stamp(0)
    e("s_cmp_ge_u32 s2, 256")
    e("s_cbranch_scc1 K5_end")
    k.srd(12, 8, HF_BYTES, WS_HF)
    k.srd(16, 8, WF_BYTES, WS_W2F)
    k.srd(36, 8, H_BYTES, WS_H)
    e("s_and_b32 s8, s2, 3")
    e("s_lshl_b32 s8, s8, 3")
    e("s_lshr_b32 s9, s2, 3")
    e("s_and_b32 s10, s9, 7")
    e("s_add_u32 s8, s8, s10")
    e("s_lshr_b32 s9, s9, 3")
    e("s_lshr_b32 s10, s2, 2")
    e("s_and_b32 s10, s10, 1")
    e("s_lshl_b32 s10, s10, 2")
    e("s_add_u32 s9, s9, s10")
    e("s_lshl_b32 s8, s8, 2")
    e("s_add_u32 s8, s8, s3")
    e("s_mul_i32 s10, s8, %d" % (48 * 1024))
    e("s_mul_i32 s11, s9, %d" % (240 * 1024))
    e("s_mul_i32 s28, s3, 5120")
    e("v_lshlrev_b32 v2, 4, v1")
    ACC = 16
    AB = [36, 56]
    BF = 76
    EP = 176
    NCH = 12
    PD = K5_SLOTS - 1

    def dma(c):
        slot = c % K5_SLOTS
        e("s_add_u32 s29, s28, %d" % (slot * 20480))
        e("s_add_u32 s30, s28, %d" % (c * 20480))
        e("s_add_u32 s30, s30, s11")
        e("s_mov_b32 m0, s29")
        e("s_nop 0")
        for i in range(4):
            k.vm("buffer_load_dwordx4 v2, s[16:19], s30 offen offset:%d lds" % (i * 1024), "d%d" % c)
        e("s_add_u32 s29, s29, 4096")
        e("s_add_u32 s30, s30, 4096")
        e("s_mov_b32 m0, s29")
        e("s_nop 0")
        k.vm("buffer_load_dwordx4 v2, s[16:19], s30 offen lds", "d%d" % c)

    def bl(c):
        st = c % K5_SLOTS
        e("s_add_u32 s31, s10, %d" % (4 * c * 1024))
        for s in range(4):
            k.vm("buffer_load_dwordx4 %s, v2, s[12:15], s31 offen offset:%d" % (vq(BF + st * 16 + s * 4), s * 1024), "b%d" % c)

    def areads(c, s, buf):
        slot = c % K5_SLOTS
        vb, off = (2, slot * 20480) if slot < 3 else (3, (slot - 3) * 20480)
        for i in range(5):
            e("ds_read_b128 %s, v%d offset:%d" % (vq(AB[buf] + 4 * i), vb, off + s * 5120 + i * 1024))

    for c in range(PD):
        dma(c)
        bl(c)
    k.srd(20, 6, H_BYTES)
    k.srd(24, 4, 1280)
    e("v_add_u32 v3, 61440, v2")
    for i in range(20):
        e("v_mov_b32 v%d, 0" % (ACC + i))
    for c in range(NCH):
        k.vmwait("d%d" % c, "b%d" % c)
        e("s_barrier")
        if c in (0, 1, 2, 4):
            k.stamp(1 + (0, 1, 2, 0, 3)[c])
        if c + PD < NCH:
            dma(c + PD)
            bl(c + PD)
        if c == NCH - PD:
            e("v_and_b32 v5, 15, v1")
            e("s_lshl_b32 s32, s8, 4")
            e("v_add_u32 v5, s32, v5")
            e("v_lshrrev_b32 v6, 4, v1")
            e("v_lshrrev_b32 v7, 1, v5")
            e("v_mul_u32_u24 v7, 2560, v7")
            e("v_lshl_add_u32 v7, v6, 4, v7")
            e("v_lshlrev_b32 v8, 3, v6")
            e("v_mul_u32_u24 v9, 1280, v5")
            e("v_add_u32 v9, v9, v8")
            e("v_and_b32 v10, 1, v5")
            e("v_lshlrev_b32 v10, 4, v10")
            e("s_mul_i32 s33, s9, 320")
            e("s_mul_i32 s34, s9, 160")
            for i in range(5):
                k.vm("buffer_load_dwordx4 %s, v7, s[36:39], s33 offen offset:%d" % (vq(EP + 4 * i), i * 64), "ep")
                k.vm("buffer_load_dwordx2 %s, v8, s[24:27], s34 offen offset:%d" % (vp(EP + 20 + 2 * i), i * 32), "ep")
        st = c % K5_SLOTS
        areads(c, 0, 0)
        for s in range(4):
            buf = s % 2
            if s < 3:
                areads(c, s + 1, 1 - buf)
                e("s_waitcnt lgkmcnt(5)")
            else:
                e("s_waitcnt lgkmcnt(0)")
            for i in range(5):
                e("v_mfma_f32_16x16x32_bf16 v[%d:%d], %s, %s, v[%d:%d]" % (
                    ACC + 4 * i, ACC + 4 * i + 3, vq(AB[buf] + 4 * i), vq(BF + st * 16 + s * 4), ACC + 4 * i, ACC + 4 * i + 3))
    k.vmwait("ep")
    k.stamp(5)
    k.nop(10)
    t0, t1, p = 12, 13, 14
    for i in range(5):
        for hp in range(2):
            a0 = ACC + 4 * i + 2 * hp
            a1 = a0 + 1
            bias = EP + 20 + 2 * i + hp
            h0 = EP + 4 * i + 2 * hp
            h1 = h0 + 1
            e("v_cvt_pk_bf16_f32 v%d, v%d, v%d" % (p, a0, a1))
            e("v_lshlrev_b32 v%d, 16, v%d" % (a0, p))
            e("v_and_b32 v%d, 0xffff0000, v%d" % (a1, p))
            e("v_lshlrev_b32 v%d, 16, v%d" % (t0, bias))
            e("v_and_b32 v%d, 0xffff0000, v%d" % (t1, bias))
            e("v_pk_add_f32 %s, %s, %s" % (vp(a0), vp(a0), vp(t0)))
            e("v_cvt_pk_bf16_f32 v%d, v%d, v%d" % (p, a0, a1))
            e("v_lshlrev_b32 v%d, 16, v%d" % (a0, p))
            e("v_and_b32 v%d, 0xffff0000, v%d" % (a1, p))
            e("v_lshrrev_b32 v%d, v10, v%d" % (t0, h0))
            e("v_lshrrev_b32 v%d, v10, v%d" % (t1, h1))
            e("v_lshlrev_b32 v%d, 16, v%d" % (t0, t0))
            e("v_lshlrev_b32 v%d, 16, v%d" % (t1, t1))
            e("v_pk_add_f32 %s, %s, %s" % (vp(a0), vp(a0), vp(t0)))
            e("v_cvt_pk_bf16_f32 v%d, v%d, v%d" % (bias, a0, a1))
        e("buffer_store_dwordx2 %s, v9, s[20:23], s34 offen offset:%d" % (vp(EP + 20 + 2 * i), i * 32))
    k.stamp_flush(6)
    k.label("K5_end")
    k.rt_end(4)
    e("s_endpgm")
    return k, 208


def table(name, n):
    out = [".p2align 8", ".type %s,@object" % name, "%s:" % name]
    for i in range(n):
        a = -2.0 * math.pi * i / n
        out.append("    .long 0x%08x, 0x%08x" % (f2u(math.cos(a)), f2u(math.sin(a))))
    out.append(".size %s, %d" % (name, n * 8))
    return out


def main():
    ref = open(REF).read().splitlines()
    head = [l for l in ref if l.startswith(";") and "@launch" not in l and "Override" not in l and "grid=ceil" not in l]
    k1, v1 = gen_k1()
    k2, v2 = gen_k2()
    k3, v3 = gen_k3()
    k4, v4 = gen_k4()
    k5, v5 = gen_k5()
    L = list(head)
    L.append("; @launch kernel=k1_kernel grid=(%d,1,1) block=(320,1,1) lds=%d" % (K1_MAIN + K1_HELP, 2 * A2BASE))
    L.append("; @launch kernel=k2_kernel grid=(%d,1,1) block=(256,1,1) lds=%d" % (K2_MAIN + K2_HELP, K2_LDS))
    L.append("; @launch kernel=k3_kernel grid=(256,1,1) block=(320,1,1) lds=%d" % (2 * A2BASE))
    L.append("; @launch kernel=k4_kernel grid=(256,1,1) block=(256,1,1) lds=%d" % K4_LDS)
    L.append("; @launch kernel=k5_kernel grid=(256,1,1) block=(256,1,1) lds=%d" % K5_LDS)
    L.append('.amdgcn_target "amdgcn-amd-amdhsa--gfx950"')
    L.append(".text")
    for kk in (k1, k2, k3, k4, k5):
        L += kk.L
    L += table("tw640", 640)
    L += table("tw2048", 2048)
    L.append('.section .rodata,"a"')
    L.append(".p2align 6")
    for nm, v in (("k1_kernel", v1), ("k2_kernel", v2), ("k3_kernel", v3), ("k4_kernel", v4), ("k5_kernel", v5)):
        L.append(kernel_desc(nm, v))
    open(OUT, "w").write("\n".join(L) + "\n")
    print("wrote", OUT, len(L), "lines")


if __name__ == "__main__":
    main()
```

```python
import math, struct, sys

NAME = "sequential_preLN__spectral_gfnet__dense_activation_squared_relu__prompt"
OUT = "cdna_kernels/%s.s" % NAME
REF = OUT + ".ref"
if len(sys.argv) > 1 and sys.argv[1] == "stamp":
    OUT = "stamp.s"

WS_X1 = 0x0000000
WS_WT = 0x0600000
WS_H = 0x0A00000
WS_LN2F = 0x0D00000
WS_HF = 0x1000000
WS_W1F = 0x1800000
WS_W2F = 0x1A00000
X1_BYTES = 322 * 2048 * 8
WT_BYTES = 322 * 2048 * 4
H_BYTES = 2048 * 640 * 2
HF_BYTES = 2048 * 1536 * 2
WF_BYTES = 640 * 1536 * 2


def f2u(x):
    return struct.unpack("<I", struct.pack("<f", x))[0]


def vp(i):
    assert i % 2 == 0, i
    return "v[%d:%d]" % (i, i + 1)


def vq(i):
    assert i % 2 == 0, i
    return "v[%d:%d]" % (i, i + 3)


def sp(i):
    assert i % 2 == 0
    return "s[%d:%d]" % (i, i + 1)


def sq(i):
    assert i % 4 == 0
    return "s[%d:%d]" % (i, i + 3)


UID = 0
STAMP = len(sys.argv) > 1 and sys.argv[1] == 'stamp'


class K:
    def __init__(self):
        self.L = []
        self.q = []
        self.uid = 0

    def e(self, s):
        self.L.append("    " + s)

    def label(self, l):
        self.L.append(l + ":")

    def newlabel(self, base):
        global UID
        UID += 1
        return "L_%s_%d" % (base, UID)

    def vm(self, s, tag):
        self.e(s)
        self.q.append(tag)

    def vmwait(self, *tags):
        last = -1
        for i, t in enumerate(self.q):
            if t in tags:
                last = i
        assert last >= 0, tags
        n = len(self.q) - 1 - last
        assert n <= 63
        self.e("s_waitcnt vmcnt(%d)" % n)
        self.q = self.q[last + 1:]

    def vmreset(self):
        self.q = []

    def nop(self, n):
        while n > 0:
            m = min(n, 16)
            self.e("s_nop %d" % (m - 1))
            n -= m

    def stamp(self, i):
        if not STAMP:
            return
        self.e("s_waitcnt lgkmcnt(0)")
        self.e("s_memtime s[%d:%d]" % (70 + 2 * i, 71 + 2 * i))
        self.e("s_waitcnt lgkmcnt(0)")

    def rt_begin(self):
        if not STAMP:
            return
        self.e("s_memrealtime s[96:97]")

    def rt_end(self, kid):
        if not STAMP:
            return
        self.e("s_waitcnt vmcnt(0) lgkmcnt(0)")
        self.e("s_memrealtime s[98:99]")
        self.e("s_load_dwordx2 s[64:65], s[0:1], 80")
        self.e("s_waitcnt lgkmcnt(0)")
        self.e("s_mov_b64 exec, -1")
        self.e("s_add_u32 s60, s64, 0x%x" % (0x3000000 + kid * 0x10000))
        self.e("s_addc_u32 s61, s65, 0")
        self.e("s_and_b32 s61, s61, 0xffff")
        self.e("s_mov_b32 s62, 0x10000")
        self.e("s_mov_b32 s63, 0x20000")
        self.e("s_lshl_b32 s66, s2, 5")
        self.e("s_lshl_b32 s67, s3, 2")
        self.e("s_add_u32 s66, s66, s67")
        self.e("v_mov_b32 v0, 0")
        self.e("v_mov_b32 v1, s96")
        self.e("v_mov_b32 v2, s98")
        self.e("s_cmp_ge_u32 s3, 4")
        l2 = self.newlabel("rt")
        self.e("s_cbranch_scc1 %s" % l2)
        self.e("buffer_store_dword v1, v0, s[60:63], s66 offen")
        self.e("buffer_store_dword v2, v0, s[60:63], s66 offen offset:16")
        self.label(l2)

    def stamp_flush(self, n):
        if not STAMP:
            return
        l = self.newlabel("st")
        self.e("s_waitcnt vmcnt(0) lgkmcnt(0)")
        self.e("s_memtime s[%d:%d]" % (70 + 2 * n, 71 + 2 * n))
        self.e("s_load_dwordx2 s[64:65], s[0:1], 72")
        self.e("s_waitcnt lgkmcnt(0)")
        self.e("s_mov_b64 exec, -1")
        self.e("s_and_b32 s66, s2, 63")
        self.e("s_cmp_lg_u32 s66, 5")
        self.e("s_cbranch_scc1 %s" % l)
        self.e("s_cmp_lg_u32 s3, 0")
        self.e("s_cbranch_scc1 %s" % l)
        self.e("s_lshr_b32 s66, s2, 6")
        self.e("s_lshl_b32 s66, s66, 6")
        self.e("s_and_b32 s65, s65, 0xffff")
        self.e("s_mov_b32 s66, s66")
        self.e("s_mov_b32 s62, s64")
        self.e("s_mov_b32 s63, s65")
        self.e("s_mov_b32 s60, s64")
        self.e("s_mov_b32 s61, s65")
        self.e("s_mov_b32 s62, 256")
        self.e("s_mov_b32 s63, 0x20000")
        self.e("v_mov_b32 v0, 0")
        for i in range(n + 1):
            self.e("s_sub_u32 s67, s%d, s70" % (70 + 2 * i))
            self.e("v_mov_b32 v1, s67")
            self.e("buffer_store_dword v1, v0, s[60:63], s66 offen offset:%d" % (4 * i))
            self.e("s_nop 1")
        self.label(l)

    def srd(self, d, base, nbytes, add=0):
        self.e("s_add_u32 s%d, s%d, 0x%x" % (d, base, add))
        self.e("s_addc_u32 s%d, s%d, 0" % (d + 1, base + 1))
        self.e("s_and_b32 s%d, s%d, 0xffff" % (d + 1, d + 1))
        self.e("s_mov_b32 s%d, 0x%x" % (d + 2, nbytes))
        self.e("s_mov_b32 s%d, 0x20000" % (d + 3))

    def srd_table(self, d, label, nbytes):
        l = self.newlabel("pc")
        self.e("s_getpc_b64 %s" % sp(d))
        self.label(l)
        self.e("s_add_u32 s%d, s%d, %s - %s" % (d, d, label, l))
        self.e("s_addc_u32 s%d, s%d, 0" % (d + 1, d + 1))
        self.e("s_and_b32 s%d, s%d, 0xffff" % (d + 1, d + 1))
        self.e("s_mov_b32 s%d, 0x%x" % (d + 2, nbytes))
        self.e("s_mov_b32 s%d, 0x20000" % (d + 3))

    def sconst2(self, d, val):
        self.e("s_mov_b32 s%d, 0x%08x" % (d, f2u(val)))
        self.e("s_mov_b32 s%d, 0x%08x" % (d + 1, f2u(val)))

    def cadd(self, d, a, b):
        self.e("v_pk_add_f32 %s, %s, %s" % (vp(d), vp(a), vp(b)))

    def csub(self, d, a, b):
        self.e("v_pk_add_f32 %s, %s, %s neg_lo:[0,1] neg_hi:[0,1]" % (vp(d), vp(a), vp(b)))

    def cadd_i(self, d, a, b, sign):
        if sign > 0:
            self.e("v_pk_add_f32 %s, %s, %s op_sel:[0,1] op_sel_hi:[1,0] neg_lo:[0,1]" % (vp(d), vp(a), vp(b)))
        else:
            self.e("v_pk_add_f32 %s, %s, %s op_sel:[0,1] op_sel_hi:[1,0] neg_hi:[0,1]" % (vp(d), vp(a), vp(b)))

    def cfma_s(self, d, a, s, c, neg=False):
        m = " neg_lo:[1,0,0] neg_hi:[1,0,0]" if neg else ""
        self.e("v_pk_fma_f32 %s, %s, %s, %s%s" % (vp(d), vp(a), sp(s), vp(c), m))

    def cmul_s(self, d, a, s):
        self.e("v_pk_mul_f32 %s, %s, %s" % (vp(d), vp(a), sp(s)))

    def cfma_si(self, d, a, s, c, sign):
        if sign > 0:
            m = "neg_lo:[1,0,0]"
        else:
            m = "neg_hi:[1,0,0]"
        self.e("v_pk_fma_f32 %s, %s, %s, %s op_sel:[1,0,0] op_sel_hi:[0,1,1] %s" % (vp(d), vp(a), sp(s), vp(c), m))

    def cmul(self, d, x, w, t, conj=False):
        self.e("v_pk_mul_f32 %s, %s, %s op_sel:[0,0] op_sel_hi:[1,0]" % (vp(t), vp(x), vp(w)))
        m = "neg_hi:[1,0,0]" if conj else "neg_lo:[1,0,0]"
        self.e("v_pk_fma_f32 %s, %s, %s, %s op_sel:[1,1,0] op_sel_hi:[0,1,1] %s" % (vp(d), vp(x), vp(w), vp(t), m))

    def fft8(self, X, T, sR, inv):
        sg = 1 if inv else -1
        for j in range(4):
            self.cadd(T[j], X[j], X[j + 4])
            self.csub(T[j + 4], X[j], X[j + 4])
        b0, b1, b2, b3, u5, u7, d0, d1 = X
        self.cadd(b0, T[0], T[2])
        self.csub(b1, T[0], T[2])
        self.cadd(b2, T[1], T[3])
        self.csub(b3, T[1], T[3])
        a5, a7 = T[5], T[7]
        if not inv:
            self.e("v_pk_add_f32 %s, %s, %s op_sel:[0,1] op_sel_hi:[1,0] neg_hi:[0,1]" % (vp(u5), vp(a5), vp(a5)))
            self.e("v_pk_add_f32 %s, %s, %s op_sel:[0,1] op_sel_hi:[1,0] neg_lo:[1,0] neg_hi:[1,1]" % (vp(u7), vp(a7), vp(a7)))
        else:
            self.e("v_pk_add_f32 %s, %s, %s op_sel:[0,1] op_sel_hi:[1,0] neg_lo:[0,1]" % (vp(u5), vp(a5), vp(a5)))
            self.e("v_pk_add_f32 %s, %s, %s op_sel:[0,1] op_sel_hi:[1,0] neg_lo:[1,1] neg_hi:[1,0]" % (vp(u7), vp(a7), vp(a7)))
        self.cadd_i(d0, T[4], T[6], sg)
        self.cadd_i(d1, T[4], T[6], -sg)
        d2u, d3u = T[5], T[7]
        self.cadd(d2u, u5, u7)
        self.csub(d3u, u5, u7)
        self.cadd(T[0], b0, b2)
        self.csub(T[4], b0, b2)
        self.cadd_i(T[2], b1, b3, sg)
        self.cadd_i(T[6], b1, b3, -sg)
        self.cfma_s(T[1], d2u, sR, d0)
        self.cfma_s(T[5], d2u, sR, d0, neg=True)
        self.cfma_si(T[3], d3u, sR, d1, sg)
        self.cfma_si(T[7], d3u, sR, d1, -sg)

    def fft4(self, X, T, inv):
        sg = 1 if inv else -1
        self.cadd(T[0], X[0], X[2])
        self.csub(T[1], X[0], X[2])
        self.cadd(T[2], X[1], X[3])
        self.csub(T[3], X[1], X[3])
        self.cadd(X[0], T[0], T[2])
        self.csub(X[2], T[0], T[2])
        self.cadd_i(X[1], T[1], T[3], sg)
        self.cadd_i(X[3], T[1], T[3], -sg)

    def dft5(self, Y, X, C, inv):
        sg = 1 if inv else -1
        t1, t2, t3, t4, s, a, b, c, d = X[:9]
        self.cadd(t1, Y[1], Y[4])
        self.cadd(t2, Y[2], Y[3])
        self.csub(t3, Y[1], Y[4])
        self.csub(t4, Y[2], Y[3])
        self.cfma_s(a, t1, C['c1'], Y[0])
        self.cfma_s(b, t1, C['c2'], Y[0])
        self.cmul_s(c, t3, C['s1'])
        self.cmul_s(d, t3, C['s2'])
        self.cadd(s, t1, t2)
        self.cfma_s(a, t2, C['c2'], a)
        self.cfma_s(b, t2, C['c1'], b)
        self.cfma_s(c, t4, C['s2'], c)
        self.cfma_s(d, t4, C['s1'], d, neg=True)
        self.cadd(Y[0], Y[0], s)
        self.cadd_i(Y[1], a, c, sg)
        self.cadd_i(Y[4], a, c, -sg)
        self.cadd_i(Y[2], b, d, sg)
        self.cadd_i(Y[3], b, d, -sg)

    def fft10(self, X, T, C, inv):
        for n2 in range(5):
            i0 = (2 * n2) % 10
            i1 = (5 + 2 * n2) % 10
            self.cadd(T[n2], X[i0], X[i1])
            self.csub(T[5 + n2], X[i0], X[i1])
        self.dft5(T[0:5], X, C, inv)
        self.dft5(T[5:10], X, C, inv)
        R = [None] * 10
        for k2 in range(5):
            R[(6 * k2) % 10] = T[k2]
            R[(5 + 6 * k2) % 10] = T[5 + k2]
        return R

    def consts5(self, base):
        C = {'c1': base, 'c2': base + 2, 's1': base + 4, 's2': base + 6}
        self.sconst2(C['c1'], math.cos(2 * math.pi / 5))
        self.sconst2(C['c2'], math.cos(4 * math.pi / 5))
        self.sconst2(C['s1'], math.sin(2 * math.pi / 5))
        self.sconst2(C['s2'], math.sin(4 * math.pi / 5))
        return C

    def allreduce2(self, a, b, ta, tb):
        for perm in ("quad_perm:[1,0,3,2]", "quad_perm:[2,3,0,1]", "row_half_mirror", "row_mirror"):
            self.nop(2)
            self.e("v_add_f32_dpp v%d, v%d, v%d %s row_mask:0xf bank_mask:0xf" % (a, a, a, perm))
            self.e("v_add_f32_dpp v%d, v%d, v%d %s row_mask:0xf bank_mask:0xf" % (b, b, b, perm))
        for sw in ("v_permlane16_swap_b32", "v_permlane32_swap_b32"):
            self.e("v_mov_b32 v%d, v%d" % (ta, a))
            self.e("v_mov_b32 v%d, v%d" % (tb, b))
            self.nop(2)
            self.e("%s v%d, v%d" % (sw, a, ta))
            self.e("%s v%d, v%d" % (sw, b, tb))
            self.nop(1)
            self.e("v_add_f32 v%d, v%d, v%d" % (a, a, ta))
            self.e("v_add_f32 v%d, v%d, v%d" % (b, b, tb))

    def div640(self, d, s, t, sInv, s640):
        self.e("v_mul_f32 v%d, s%d, v%d" % (d, sInv, s))
        self.e("v_fma_f32 v%d, -v%d, s%d, v%d" % (t, d, s640, s))
        self.e("v_fma_f32 v%d, v%d, s%d, v%d" % (d, t, sInv, d))

    def layernorm2(self, A, B, OUTP, tmp, sInv, s640, sEps):
        sa, sb, ta, tb, ma, mb, va, vb, ra, rb, p, d0, d1, e0 = tmp[:14]
        self.e("v_add_f32 v%d, v%d, v%d" % (sa, A[0], A[1]))
        self.e("v_add_f32 v%d, v%d, v%d" % (sb, B[0], B[1]))
        for j in range(2, 10):
            self.e("v_add_f32 v%d, v%d, v%d" % (sa, sa, A[j]))
            self.e("v_add_f32 v%d, v%d, v%d" % (sb, sb, B[j]))
        self.allreduce2(sa, sb, ta, tb)
        self.div640(ma, sa, ta, sInv, s640)
        self.div640(mb, sb, tb, sInv, s640)
        for j in range(10):
            self.e("v_sub_f32 v%d, v%d, v%d" % (d0, A[j], ma))
            self.e("v_sub_f32 v%d, v%d, v%d" % (d1, B[j], mb))
            if j == 0:
                self.e("v_mul_f32 v%d, v%d, v%d" % (sa, d0, d0))
                self.e("v_mul_f32 v%d, v%d, v%d" % (sb, d1, d1))
            else:
                self.e("v_fma_f32 v%d, v%d, v%d, v%d" % (sa, d0, d0, sa))
                self.e("v_fma_f32 v%d, v%d, v%d, v%d" % (sb, d1, d1, sb))
        self.allreduce2(sa, sb, ta, tb)
        self.div640(va, sa, ta, sInv, s640)
        self.div640(vb, sb, tb, sInv, s640)
        self.e("v_cvt_pk_bf16_f32 v%d, v%d, v%d" % (p, ma, mb))
        self.e("v_lshlrev_b32 v%d, 16, v%d" % (ma, p))
        self.e("v_and_b32 v%d, 0xffff0000, v%d" % (mb, p))
        self.e("v_cvt_pk_bf16_f32 v%d, v%d, v%d" % (p, va, vb))
        self.e("v_lshlrev_b32 v%d, 16, v%d" % (va, p))
        self.e("v_and_b32 v%d, 0xffff0000, v%d" % (vb, p))
        self.e("v_add_f32 v%d, s%d, v%d" % (va, sEps, va))
        self.e("v_add_f32 v%d, s%d, v%d" % (vb, sEps, vb))
        self.e("v_cvt_pk_bf16_f32 v%d, v%d, v%d" % (p, va, vb))
        self.e("v_lshlrev_b32 v%d, 16, v%d" % (va, p))
        self.e("v_and_b32 v%d, 0xffff0000, v%d" % (vb, p))
        self.e("v_sqrt_f32 v%d, v%d" % (va, va))
        self.e("v_sqrt_f32 v%d, v%d" % (vb, vb))
        self.nop(1)
        self.e("v_cvt_pk_bf16_f32 v%d, v%d, v%d" % (p, va, vb))
        self.e("v_lshlrev_b32 v%d, 16, v%d" % (va, p))
        self.e("v_and_b32 v%d, 0xffff0000, v%d" % (vb, p))
        self.e("v_rcp_f32 v%d, v%d" % (ra, va))
        self.e("v_rcp_f32 v%d, v%d" % (rb, vb))
        self.nop(1)
        for j in range(10):
            o = OUTP[j]
            self.e("v_sub_f32 v%d, v%d, v%d" % (d0, A[j], ma))
            self.e("v_sub_f32 v%d, v%d, v%d" % (d1, B[j], mb))
            self.e("v_cvt_pk_bf16_f32 v%d, v%d, v%d" % (p, d0, d1))
            self.e("v_lshlrev_b32 v%d, 16, v%d" % (d0, p))
            self.e("v_and_b32 v%d, 0xffff0000, v%d" % (d1, p))
            self.e("v_mul_f32 v%d, v%d, v%d" % (o, d0, ra))
            self.e("v_mul_f32 v%d, v%d, v%d" % (o + 1, d1, rb))
            self.e("v_fma_f32 v%d, -v%d, v%d, v%d" % (d0, o, va, d0))
            self.e("v_fma_f32 v%d, -v%d, v%d, v%d" % (d1, o + 1, vb, d1))
            self.e("v_fma_f32 v%d, v%d, v%d, v%d" % (o, d0, ra, o))
            self.e("v_fma_f32 v%d, v%d, v%d, v%d" % (o + 1, d1, rb, o + 1))
            self.e("v_cvt_pk_bf16_f32 v%d, v%d, v%d" % (p, o, o + 1))
            self.e("v_lshlrev_b32 v%d, 16, v%d" % (o, p))
            self.e("v_and_b32 v%d, 0xffff0000, v%d" % (o + 1, p))


def kernel_header(k, name):
    k.L.append(".p2align 8")
    k.L.append(".globl %s" % name)
    k.L.append(".type %s,@function" % name)
    k.label(name)


def kernel_desc(name, vgpr, sgpr=102):
    vg = (vgpr + 3) // 4 * 4
    return "\n".join([
        ".amdhsa_kernel %s" % name,
        "  .amdhsa_next_free_vgpr %d" % vgpr,
        "  .amdhsa_next_free_sgpr %d" % sgpr,
        "  .amdhsa_accum_offset %d" % vg,
        "  .amdhsa_group_segment_fixed_size 0",
        "  .amdhsa_kernarg_size 88",
        "  .amdhsa_user_sgpr_count 2",
        "  .amdhsa_user_sgpr_kernarg_segment_ptr 1",
        "  .amdhsa_system_sgpr_workgroup_id_x 1",
        ".end_amdhsa_kernel"])


R2 = 1.0 / math.sqrt(2.0)
P1 = 576
A2BASE = 40 * P1
P3 = 5248

def layernorm_pk(k, P, tmp, sC):
    e = k.e
    S, M, V, R, D, Q, TT, U = tmp[:8]
    e("v_pk_add_f32 %s, %s, %s" % (vp(S), vp(P[0]), vp(P[1])))
    for j in range(2, 10):
        e("v_pk_add_f32 %s, %s, %s" % (vp(S), vp(S), vp(P[j])))
    k.allreduce2(S, S + 1, TT, TT + 1)
    e("v_pk_mul_f32 %s, %s, %s" % (vp(M), vp(S), sp(sC['inv640'])))
    e("v_pk_fma_f32 %s, %s, %s, %s neg_lo:[1,0,0] neg_hi:[1,0,0]" % (vp(TT), vp(M), sp(sC['c640']), vp(S)))
    e("v_pk_fma_f32 %s, %s, %s, %s" % (vp(M), vp(TT), sp(sC['inv640']), vp(M)))
    for j in range(10):
        e("v_pk_add_f32 %s, %s, %s neg_lo:[0,1] neg_hi:[0,1]" % (vp(D), vp(P[j]), vp(M)))
        if j == 0:
            e("v_pk_mul_f32 %s, %s, %s" % (vp(S), vp(D), vp(D)))
        else:
            e("v_pk_fma_f32 %s, %s, %s, %s" % (vp(S), vp(D), vp(D), vp(S)))
    k.allreduce2(S, S + 1, TT, TT + 1)
    e("v_pk_mul_f32 %s, %s, %s" % (vp(V), vp(S), sp(sC['inv640'])))
    e("v_pk_fma_f32 %s, %s, %s, %s neg_lo:[1,0,0] neg_hi:[1,0,0]" % (vp(TT), vp(V), sp(sC['c640']), vp(S)))
    e("v_pk_fma_f32 %s, %s, %s, %s" % (vp(V), vp(TT), sp(sC['inv640']), vp(V)))

    def rnd(x):
        e("v_cvt_pk_bf16_f32 v%d, v%d, v%d" % (U, x, x + 1))
        e("v_lshlrev_b32 v%d, 16, v%d" % (x, U))
        e("v_and_b32 v%d, 0xffff0000, v%d" % (x + 1, U))
    rnd(M)
    rnd(V)
    e("v_pk_add_f32 %s, %s, %s" % (vp(V), vp(V), sp(sC['eps'])))
    rnd(V)
    e("v_sqrt_f32 v%d, v%d" % (V, V))
    e("v_sqrt_f32 v%d, v%d" % (V + 1, V + 1))
    k.nop(1)
    rnd(V)
    e("v_rcp_f32 v%d, v%d" % (R, V))
    e("v_rcp_f32 v%d, v%d" % (R + 1, V + 1))
    k.nop(1)
    for j in range(10):
        e("v_pk_add_f32 %s, %s, %s neg_lo:[0,1] neg_hi:[0,1]" % (vp(D), vp(P[j]), vp(M)))
        rnd(D)
        e("v_pk_mul_f32 %s, %s, %s" % (vp(Q), vp(D), vp(R)))
        e("v_pk_fma_f32 %s, %s, %s, %s neg_lo:[1,0,0] neg_hi:[1,0,0]" % (vp(D), vp(Q), vp(V), vp(D)))
        e("v_pk_fma_f32 %s, %s, %s, %s" % (vp(Q), vp(D), vp(R), vp(Q)))
        e("v_cvt_pk_bf16_f32 v%d, v%d, v%d" % (P[j], Q, Q + 1))


def ln_consts(k, base):
    sC = {'inv640': base, 'c640': base + 2, 'eps': base + 4}
    k.sconst2(sC['inv640'], 1.0 / 640.0)
    k.sconst2(sC['c640'], 640.0)
    k.sconst2(sC['eps'], 1e-5)
    return sC


K1_MAIN = 256
K1_HELP = 154


def gen_k1():
    k = K()
    kernel_header(k, "k1_kernel")
    k.rt_begin()
    e = k.e
    e("s_load_dwordx2 s[4:5], s[0:1], 0")
    e("s_load_dwordx4 s[8:11], s[0:1], 8")
    e("s_load_dwordx2 s[6:7], s[0:1], 80")
    e("v_lshrrev_b32 v2, 6, v0")
    e("v_and_b32 v1, 63, v0")
    e("s_nop 0")
    e("v_readfirstlane_b32 s3, v2")
    e("s_waitcnt lgkmcnt(0)")
    k.stamp(0)
    e("s_cmp_ge_u32 s2, %d" % K1_MAIN)
    e("s_cbranch_scc1 K1_helper")
    k.srd(12, 4, H_BYTES)
    k.srd(16, 6, X1_BYTES, WS_X1)
    k.srd_table(20, "tw640", 640 * 8)
    X = [10 + 2 * i for i in range(10)]
    T = [30 + 2 * i for i in range(10)]
    TW1 = [50 + 2 * i for i in range(9)]
    TW2 = [68 + 2 * i for i in range(7)]
    TMP = [82 + 2 * i for i in range(8)]
    e("v_lshrrev_b32 v3, 3, v0")
    e("v_and_b32 v4, 7, v0")
    e("s_cmp_ge_u32 s3, 4")
    e("s_cbranch_scc1 K1_ld_skip")
    e("s_lshl_b32 s37, s2, 3")
    e("s_lshl_b32 s38, s3, 1")
    e("s_add_u32 s37, s37, s38")
    e("s_mul_i32 s37, s37, 1280")
    e("v_lshlrev_b32 v5, 1, v1")
    for j in range(10):
        e("buffer_load_ushort v%d, v5, s[12:15], s37 offen offset:%d" % (X[j], j * 128))
        e("buffer_load_ushort v%d, v5, s[12:15], s37 offen offset:%d" % (X[j] + 1, 1280 + j * 128))
    e("v_lshlrev_b32 v5, 3, v1")
    for q1 in range(1, 10):
        e("v_mul_u32_u24 v6, %d, v5" % q1)
        e("buffer_load_dwordx2 %s, v6, s[20:23], 0 offen" % vp(TW1[q1 - 1]))
    k.label("K1_ld_skip")
    e("v_mul_u32_u24 v5, 80, v4")
    for q2 in range(1, 8):
        e("v_mul_u32_u24 v6, %d, v5" % q2)
        e("buffer_load_dwordx2 %s, v6, s[20:23], 0 offen" % vp(TW2[q2 - 1]))
    k.sconst2(24, R2)
    C5 = k.consts5(26)
    sC = ln_consts(k, 40)
    e("s_cmp_ge_u32 s3, 4")
    e("s_cbranch_scc1 K1_s1_done")
    e("s_waitcnt vmcnt(16)")
    k.stamp(1)
    for j in range(10):
        e("v_lshlrev_b32 v%d, 16, v%d" % (X[j], X[j]))
        e("v_lshlrev_b32 v%d, 16, v%d" % (X[j] + 1, X[j] + 1))
    layernorm_pk(k, X, TMP, sC)
    for j in range(10):
        e("v_and_b32 v%d, 0xffff0000, v%d" % (X[j] + 1, X[j]))
        e("v_lshlrev_b32 v%d, 16, v%d" % (X[j], X[j]))
    R = k.fft10(X, T, C5, False)
    e("s_waitcnt vmcnt(7)")
    k.stamp(2)
    e("s_mul_i32 s38, s3, %d" % (10 * P1))
    e("v_lshlrev_b32 v5, 3, v1")
    e("v_add_u32 v5, s38, v5")
    for q1 in range(10):
        if q1:
            k.cmul(R[q1], R[q1], TW1[q1 - 1], X[0])
        e("ds_write_b64 v5, %s offset:%d" % (vp(R[q1]), q1 * P1))
    k.label("K1_s1_done")
    e("s_waitcnt vmcnt(0) lgkmcnt(0)")
    e("s_barrier")
    k.stamp(3)
    X8 = X[:8]
    T8 = T[:8]
    e("v_mul_u32_u24 v5, %d, v3" % P1)
    e("v_lshl_add_u32 v5, v4, 3, v5")
    for j in range(8):
        e("ds_read_b64 %s, v5 offset:%d" % (vp(X8[j]), j * 64))
    e("s_waitcnt lgkmcnt(0)")
    k.fft8(X8, T8, 24, False)
    for q2 in range(8):
        if q2:
            k.cmul(T8[q2], T8[q2], TW2[q2 - 1], X8[0])
        e("ds_write_b64 v5, %s offset:%d" % (vp(T8[q2]), A2BASE + q2 * 64))
    e("s_waitcnt lgkmcnt(0)")
    e("s_barrier")
    k.stamp(4)
    e("v_mul_u32_u24 v5, %d, v3" % P1)
    e("v_lshl_add_u32 v5, v4, 6, v5")
    for j in range(4):
        e("ds_read_b128 %s, v5 offset:%d" % (vq(X8[2 * j]), A2BASE + j * 16))
    e("v_mul_u32_u24 v6, 205, v3")
    e("v_lshrrev_b32 v6, 11, v6")
    e("v_mul_u32_u24 v7, 10, v6")
    e("v_sub_u32 v7, v3, v7")
    e("v_mul_u32_u24 v8, 10, v4")
    e("v_add_u32 v7, v7, v8")
    e("v_lshlrev_b32 v7, 3, v7")
    e("v_mul_u32_u24 v6, %d, v6" % P3)
    e("v_add_u32 v7, v7, v6")
    e("s_waitcnt lgkmcnt(0)")
    k.fft8(X8, T8, 24, False)
    for q3 in range(8):
        e("ds_write_b64 v7, %s offset:%d" % (vp(T8[q3]), q3 * 640))
    e("v_and_b32 v8, 3, v0")
    e("v_lshrrev_b32 v9, 2, v0")
    e("v_mul_u32_u24 v5, %d, v8" % P3)
    e("v_sub_u32 v6, 400, v9")
    e("v_lshl_add_u32 v6, v6, 3, v5")
    e("v_lshl_add_u32 v5, v9, 3, v5")
    e("v_cmp_gt_u32 vcc, 4, v0")
    e("v_add_u32 v3, %d, v6" % (3 * 640))
    e("v_subrev_u32 v4, %d, v3" % (320 * 8))
    e("v_lshlrev_b32 v7, 14, v9")
    e("v_cndmask_b32 v3, v3, v4, vcc")
    e("v_lshl_add_u32 v7, v8, 4, v7")
    e("s_lshl_b32 s37, s2, 6")
    e("s_waitcnt lgkmcnt(0)")
    e("s_barrier")
    k.stamp(5)
    for i in range(4):
        e("ds_read_b64 %s, v5 offset:%d" % (vp(X[2 * i]), i * 640))
        if i == 0:
            e("ds_read_b64 %s, v3" % vp(X[1]))
        else:
            e("ds_read_b64 %s, v6 offset:%d" % (vp(X[2 * i + 1]), (3 - i) * 640))
    e("s_waitcnt lgkmcnt(0)")
    for i in range(4):
        z, y = X[2 * i], X[2 * i + 1]
        o = T[2 * i]
        e("v_pk_add_f32 %s, %s, %s neg_hi:[0,1]" % (vp(o), vp(z), vp(y)))
        e("v_pk_add_f32 %s, %s, %s op_sel:[1,1] op_sel_hi:[0,0] neg_hi:[1,0]" % (vp(o + 2), vp(z), vp(y)))
    e("s_cmp_lg_u32 s3, 0")
    e("s_cbranch_scc1 K1_st")
    z, y = X[0], X[1]
    o = T[0]
    s_ = TMP[0]
    e("v_pk_add_f32 %s, %s, %s" % (vp(s_), vp(z), vp(z)))
    e("v_cndmask_b32 v%d, v%d, v%d, vcc" % (o, o, s_))
    e("v_cndmask_b32 v%d, v%d, 0, vcc" % (o + 1, o + 1))
    e("v_cndmask_b32 v%d, v%d, v%d, vcc" % (o + 2, o + 2, s_ + 1))
    e("v_cndmask_b32 v%d, v%d, 0, vcc" % (o + 3, o + 3))
    q = 50
    e("v_add_f32 v%d, v%d, v%d" % (q, y, y))
    e("v_mov_b32 v%d, 0" % (q + 1))
    e("v_add_f32 v%d, v%d, v%d" % (q + 2, y + 1, y + 1))
    e("v_mov_b32 v%d, 0" % (q + 3))
    e("s_add_u32 s38, s37, 0x%x" % (320 * 16384))
    e("s_and_saveexec_b64 s[46:47], vcc")
    e("buffer_store_dwordx4 %s, v7, s[16:19], s38 offen" % vq(q))
    e("s_mov_b64 exec, s[46:47]")
    k.label("K1_st")
    for i in range(4):
        e("buffer_store_dwordx4 %s, v7, s[16:19], s37 offen" % vq(T[2 * i]))
        if i < 3:
            e("s_add_u32 s37, s37, 0x%x" % (80 * 16384))
    k.stamp_flush(6)
    k.label("K1_end")
    k.rt_end(0)
    e("s_endpgm")
    k.label("K1_helper")
    e("s_sub_u32 s4, s2, %d" % K1_MAIN)
    e("s_mul_i32 s4, s4, 5")
    e("s_add_u32 s4, s4, s3")
    e("s_cmp_ge_u32 s4, 768")
    e("s_cbranch_scc1 K1_end")
    k.srd(12, 8, 2048 * 321 * 2)
    k.srd(16, 10, 2048 * 321 * 2)
    k.srd(20, 6, WT_BYTES, WS_WT)
    e("s_and_b32 s5, s4, 127")
    e("s_lshr_b32 s24, s4, 7")
    e("s_lshr_b32 s25, s5, 4")
    e("s_lshr_b32 s26, s5, 1")
    e("s_and_b32 s26, s26, 7")
    e("s_lshl_b32 s26, s26, 3")
    e("s_add_u32 s25, s25, s26")
    e("s_and_b32 s26, s5, 1")
    e("s_lshl_b32 s26, s26, 8")
    e("s_add_u32 s25, s25, s26")
    e("s_mul_i32 s25, s25, 642")
    e("s_lshl_b32 s27, s24, 6")
    e("v_add_u32 v2, s27, v1")
    e("v_lshlrev_b32 v3, 1, v2")
    e("v_lshlrev_b32 v4, 13, v2")
    e("s_lshl_b32 s28, s5, 6")
    e("v_cmp_gt_u32 vcc, 321, v2")
    e("s_and_saveexec_b64 s[40:41], vcc")
    e("s_cbranch_execz K1_end")
    for q3 in range(4):
        for q4 in range(4):
            i = q3 * 4 + q4
            e("s_add_u32 s29, s25, %d" % ((64 * q3 + 512 * q4) * 642))
            e("buffer_load_ushort v%d, v3, s[12:15], s29 offen" % (10 + i))
            e("buffer_load_ushort v%d, v3, s[16:19], s29 offen" % (26 + i))
    e("s_waitcnt vmcnt(0)")
    for i in range(16):
        e("v_lshl_or_b32 v%d, v%d, 16, v%d" % (10 + i, 26 + i, 10 + i))
    for i in range(4):
        e("buffer_store_dwordx4 %s, v4, s[20:23], s28 offen offset:%d" % (vq(10 + 4 * i), i * 16))
    k.rt_end(0)
    e("s_endpgm")
    return k, 100


K2_MAIN = 321
K2_HELP = 240
E1B = 0
E2B = 16384
E3B = E2B + 64 * 288
K2_LDS = E3B + 64 * 288


def wprep_variant(k, which):
    e = k.e
    if which == 1:
        pitch, per, srcofs, dst = 3072, 10, 32, WS_W1F
    else:
        pitch, per, srcofs, dst = 1280, 12, 48, WS_W2F
    e("s_load_dwordx2 s[8:9], s[0:1], %d" % srcofs)
    magic = (1 << 20) // per + 1
    e("s_mul_i32 s5, s4, %d" % magic)
    e("s_lshr_b32 s5, s5, 20")
    e("s_mul_i32 s24, s5, %d" % per)
    e("s_sub_u32 s24, s4, s24")
    e("s_waitcnt lgkmcnt(0)")
    k.srd(12, 8, WF_BYTES)
    k.srd(16, 6, WF_BYTES, dst)
    e("v_lshlrev_b32 v4, 4, v1")
    if which == 1:
        e("v_lshrrev_b32 v2, 5, v1")
        e("v_and_b32 v3, 31, v1")
        e("v_mul_u32_u24 v2, %d, v2" % (8 * pitch))
        e("v_lshl_add_u32 v2, v3, 1, v2")
        e("s_lshl_b32 s25, s5, 6")
        e("s_mul_i32 s26, s24, %d" % (64 * pitch))
        e("s_add_u32 s25, s25, s26")
        e("s_mul_i32 s27, s5, %d" % (40 * 1024))
        e("s_lshl_b32 s26, s24, 12")
        e("s_add_u32 s27, s27, s26")
        kper, dstep = 16, 1024
        joff = lambda j: j
    else:
        e("v_lshrrev_b32 v2, 5, v1")
        e("v_lshrrev_b32 v3, 4, v1")
        e("v_and_b32 v3, 1, v3")
        e("v_lshl_add_u32 v2, v2, 2, v3")
        e("v_mul_u32_u24 v2, %d, v2" % (4 * pitch))
        e("v_and_b32 v3, 15, v1")
        e("v_lshl_add_u32 v2, v3, 1, v2")
        e("s_lshl_b32 s25, s5, 5")
        e("s_mul_i32 s26, s24, %d" % (128 * pitch))
        e("s_add_u32 s25, s25, s26")
        e("s_mul_i32 s26, s5, 52429")
        e("s_lshr_b32 s26, s26, 18")
        e("s_mul_i32 s27, s26, 5")
        e("s_sub_u32 s27, s5, s27")
        e("s_mul_i32 s26, s26, 240")
        e("s_add_u32 s27, s27, s26")
        e("s_mul_i32 s26, s24, 20")
        e("s_add_u32 s27, s27, s26")
        e("s_lshl_b32 s27, s27, 10")
        kper, dstep = 32, 5120
        joff = lambda j: 8 * (j >> 2) + (j & 3)
    for sl in range(4):
        for j in range(8):
            e("s_add_u32 s28, s25, %d" % ((kper * sl + joff(j)) * pitch))
            e("buffer_load_ushort v%d, v2, s[12:15], s28 offen" % (10 + sl * 8 + j))
    e("s_waitcnt vmcnt(0)")
    for sl in range(4):
        for jj in range(4):
            e("v_lshl_or_b32 v%d, v%d, 16, v%d" % (50 + sl * 4 + jj, 10 + sl * 8 + 2 * jj + 1, 10 + sl * 8 + 2 * jj))
    for sl in range(4):
        e("buffer_store_dwordx4 %s, v4, s[16:19], s27 offen" % vq(50 + sl * 4))
        if sl < 3:
            e("s_add_u32 s27, s27, %d" % dstep)
    k.rt_end(1)
    e("s_endpgm")


def gen_k2():
    k = K()
    kernel_header(k, "k2_kernel")
    k.rt_begin()
    e = k.e
    e("s_load_dwordx2 s[6:7], s[0:1], 80")
    e("v_lshrrev_b32 v2, 6, v0")
    e("v_and_b32 v1, 63, v0")
    e("s_nop 0")
    e("v_readfirstlane_b32 s3, v2")
    e("s_waitcnt lgkmcnt(0)")
    k.stamp(0)
    e("s_cmp_ge_u32 s2, %d" % K2_MAIN)
    e("s_cbranch_scc1 K2_helper")
    k.srd(12, 6, X1_BYTES, WS_X1)
    k.srd(16, 6, WT_BYTES, WS_WT)
    k.srd_table(20, "tw2048", 2048 * 8)
    X = [10 + 2 * i for i in range(8)]
    T = [26 + 2 * i for i in range(8)]
    TW1 = [42 + 2 * i for i in range(7)]
    TW2 = [56 + 2 * i for i in range(7)]
    TW3 = [70 + 2 * i for i in range(7)]
    WV = 84
    e("s_lshl_b32 s28, s2, 14")
    e("v_lshlrev_b32 v5, 3, v0")
    for j in range(8):
        k.vm("buffer_load_dwordx2 %s, v5, s[12:15], s28 offen offset:%d" % (vp(X[j]), (j * 2048) % 4096), "x")
        if j % 2 == 1 and j < 7:
            e("s_add_u32 s28, s28, 4096")
    for q in range(1, 8):
        e("v_mul_u32_u24 v6, %d, v5" % q)
        k.vm("buffer_load_dwordx2 %s, v6, s[20:23], 0 offen" % vp(TW1[q - 1]), "tw1")
    e("v_and_b32 v3, 31, v0")
    e("v_lshlrev_b32 v7, 6, v3")
    for q in range(1, 8):
        e("v_mul_u32_u24 v6, %d, v7" % q)
        k.vm("buffer_load_dwordx2 %s, v6, s[20:23], 0 offen" % vp(TW2[q - 1]), "tw2")
    e("v_and_b32 v4, 3, v0")
    e("v_lshlrev_b32 v7, 9, v4")
    for q in range(1, 8):
        e("v_mul_u32_u24 v6, %d, v7" % q)
        k.vm("buffer_load_dwordx2 %s, v6, s[20:23], 0 offen" % vp(TW3[q - 1]), "tw3")
    e("s_lshl_b32 s29, s2, 13")
    e("v_lshlrev_b32 v6, 5, v0")
    k.vm("buffer_load_dwordx4 %s, v6, s[16:19], s29 offen" % vq(WV), "w")
    k.vm("buffer_load_dwordx4 %s, v6, s[16:19], s29 offen offset:16" % vq(WV + 4), "w")
    k.sconst2(24, R2)
    k.sconst2(26, 1.0 / (2.0 * 2048 * 640))
    e("v_lshrrev_b32 v6, 5, v0")
    e("v_lshlrev_b32 v6, 11, v6")
    e("v_lshl_add_u32 v6, v3, 3, v6")
    e("v_lshrrev_b32 v7, 5, v0")
    e("v_mul_u32_u24 v7, 2304, v7")
    e("v_lshl_add_u32 v7, v3, 3, v7")
    e("v_lshrrev_b32 v8, 2, v0")
    e("v_mul_u32_u24 v8, 288, v8")
    e("v_lshl_add_u32 v9, v4, 6, v8")
    e("v_lshl_add_u32 v8, v4, 3, v8")
    k.vmwait("x")
    k.stamp(1)
    k.fft8(X, T, 24, False)
    k.vmwait("tw1")
    k.stamp(2)
    for q in range(8):
        if q:
            k.cmul(T[q], T[q], TW1[q - 1], X[0])
        e("ds_write_b64 v5, %s offset:%d" % (vp(T[q]), E1B + q * 2048))
    e("s_waitcnt lgkmcnt(0)")
    e("s_barrier")
    k.stamp(3)
    for j in range(8):
        e("ds_read_b64 %s, v6 offset:%d" % (vp(X[j]), E1B + j * 256))
    e("s_waitcnt lgkmcnt(0)")
    k.fft8(X, T, 24, False)
    k.vmwait("tw2")
    for q in range(8):
        if q:
            k.cmul(T[q], T[q], TW2[q - 1], X[0])
        e("ds_write_b64 v7, %s offset:%d" % (vp(T[q]), E2B + q * 288))
    e("s_waitcnt lgkmcnt(0)")
    e("s_barrier")
    k.stamp(4)
    for j in range(8):
        e("ds_read_b64 %s, v8 offset:%d" % (vp(X[j]), E2B + j * 32))
    e("s_waitcnt lgkmcnt(0)")
    k.fft8(X, T, 24, False)
    k.vmwait("tw3")
    for q in range(8):
        if q:
            k.cmul(T[q], T[q], TW3[q - 1], X[0])
        e("ds_write_b64 v8, %s offset:%d" % (vp(T[q]), E3B + q * 32))
    k.vmwait("w")
    WS_ = [92 + 2 * i for i in range(8)]
    for i in range(8):
        w = WS_[i]
        e("v_lshlrev_b32 v%d, 16, v%d" % (w, WV + i))
        e("v_and_b32 v%d, 0xffff0000, v%d" % (w + 1, WV + i))
        k.cmul_s(w, w, 26)
    e("s_waitcnt lgkmcnt(0)")
    e("s_barrier")
    k.stamp(5)
    for j in range(4):
        e("ds_read_b128 %s, v9 offset:%d" % (vq(X[2 * j]), E3B + j * 16))
    e("s_waitcnt lgkmcnt(0)")
    k.fft4(X[0:4], T[0:4], False)
    k.fft4(X[4:8], T[4:8], False)
    for i in range(8):
        k.cmul(X[i], X[i], WS_[i], T[i % 4])
    k.fft4(X[0:4], T[0:4], True)
    k.fft4(X[4:8], T[4:8], True)
    for j in range(4):
        e("ds_write_b128 v9, %s offset:%d" % (vq(X[2 * j]), E3B + j * 16))
    e("s_waitcnt lgkmcnt(0)")
    e("s_barrier")
    k.stamp(6)
    for q in range(8):
        e("ds_read_b64 %s, v8 offset:%d" % (vp(X[q]), E3B + q * 32))
    e("s_waitcnt lgkmcnt(0)")
    for q in range(1, 8):
        k.cmul(X[q], X[q], TW3[q - 1], T[q], conj=True)
    k.fft8(X, T, 24, True)
    for j in range(8):
        e("ds_write_b64 v8, %s offset:%d" % (vp(T[j]), E2B + j * 32))
    e("s_waitcnt lgkmcnt(0)")
    e("s_barrier")
    k.stamp(7)
    for q in range(8):
        e("ds_read_b64 %s, v7 offset:%d" % (vp(X[q]), E2B + q * 288))
    e("s_waitcnt lgkmcnt(0)")
    for q in range(1, 8):
        k.cmul(X[q], X[q], TW2[q - 1], T[q], conj=True)
    k.fft8(X, T, 24, True)
    for j in range(8):
        e("ds_write_b64 v6, %s offset:%d" % (vp(T[j]), E1B + j * 256))
    e("s_waitcnt lgkmcnt(0)")
    e("s_barrier")
    k.stamp(8)
    for q in range(8):
        e("ds_read_b64 %s, v5 offset:%d" % (vp(X[q]), E1B + q * 2048))
    e("s_waitcnt lgkmcnt(0)")
    for q in range(1, 8):
        k.cmul(X[q], X[q], TW1[q - 1], T[q], conj=True)
    k.fft8(X, T, 24, True)
    e("s_lshl_b32 s28, s2, 14")
    for j in range(8):
        e("buffer_store_dwordx2 %s, v5, s[12:15], s28 offen offset:%d" % (vp(T[j]), (j * 2048) % 4096))
        if j % 2 == 1 and j < 7:
            e("s_add_u32 s28, s28, 4096")
    k.stamp_flush(9)
    k.label("K2_end")
    k.rt_end(1)
    e("s_endpgm")
    k.label("K2_helper")
    e("s_sub_u32 s4, s2, %d" % K2_MAIN)
    e("s_lshl_b32 s4, s4, 2")
    e("s_add_u32 s4, s4, s3")
    e("s_cmp_ge_u32 s4, 960")
    e("s_cbranch_scc1 K2_end")
    e("s_cmp_ge_u32 s4, 480")
    e("s_cbranch_scc1 K2_helper2")
    wprep_variant(k, 1)
    k.label("K2_helper2")
    e("s_sub_u32 s4, s4, 480")
    wprep_variant(k, 2)
    return k, 108


def gen_k3():
    k = K()
    kernel_header(k, "k3_kernel")
    k.rt_begin()
    e = k.e
    e("s_load_dwordx2 s[4:5], s[0:1], 0")
    e("s_load_dwordx2 s[6:7], s[0:1], 80")
    e("v_lshrrev_b32 v2, 6, v0")
    e("v_and_b32 v1, 63, v0")
    e("s_nop 0")
    e("v_readfirstlane_b32 s3, v2")
    e("s_waitcnt lgkmcnt(0)")
    k.stamp(0)
    e("s_cmp_ge_u32 s2, 256")
    e("s_cbranch_scc1 K3_end")
    k.srd(12, 4, H_BYTES)
    k.srd(16, 6, X1_BYTES, WS_X1)
    k.srd_table(20, "tw640", 640 * 8)
    X = [10 + 2 * i for i in range(10)]
    T = [30 + 2 * i for i in range(10)]
    TW1 = [50 + 2 * i for i in range(9)]
    TW2 = [68 + 2 * i for i in range(7)]
    TMP = [82 + 2 * i for i in range(8)]
    XR = [100 + 2 * i for i in range(10)]
    E320 = 120
    e("v_lshrrev_b32 v3, 3, v0")
    e("v_and_b32 v4, 7, v0")
    e("s_lshl_b32 s37, s2, 6")
    e("v_and_b32 v8, 3, v0")
    e("v_lshrrev_b32 v9, 2, v0")
    e("v_lshlrev_b32 v7, 14, v9")
    e("v_lshl_add_u32 v7, v8, 4, v7")
    e("s_mov_b32 s38, s37")
    for i in range(4):
        e("buffer_load_dwordx4 %s, v7, s[16:19], s38 offen" % vq(X[2 * i]))
        e("s_add_u32 s38, s38, 0x%x" % (80 * 16384))
    e("v_cmp_gt_u32 vcc, 4, v0")
    e("s_cmp_lg_u32 s3, 0")
    e("s_cbranch_scc1 K3_no320")
    e("s_and_saveexec_b64 s[34:35], vcc")
    e("buffer_load_dwordx4 %s, v7, s[16:19], s38 offen" % vq(E320))
    e("s_mov_b64 exec, s[34:35]")
    k.label("K3_no320")
    e("v_mul_u32_u24 v5, 80, v4")
    for n1 in range(1, 8):
        e("v_mul_u32_u24 v6, %d, v5" % n1)
        e("buffer_load_dwordx2 %s, v6, s[20:23], 0 offen" % vp(TW2[n1 - 1]))
    e("s_cmp_ge_u32 s3, 4")
    e("s_cbranch_scc1 K3_pre_done")
    e("s_lshl_b32 s38, s2, 3")
    e("s_lshl_b32 s39, s3, 1")
    e("s_add_u32 s39, s38, s39")
    e("s_mul_i32 s38, s39, 1280")
    e("v_lshlrev_b32 v5, 1, v1")
    for j in range(10):
        e("buffer_load_ushort v%d, v5, s[12:15], s38 offen offset:%d" % (XR[j], j * 128))
        e("buffer_load_ushort v%d, v5, s[12:15], s38 offen offset:%d" % (XR[j] + 1, 1280 + j * 128))
    e("v_lshlrev_b32 v5, 3, v1")
    for q1 in range(1, 10):
        e("v_mul_u32_u24 v6, %d, v5" % q1)
        e("buffer_load_dwordx2 %s, v6, s[20:23], 0 offen" % vp(TW1[q1 - 1]))
    k.label("K3_pre_done")
    k.srd(44, 6, H_BYTES, WS_H)
    k.srd(48, 6, H_BYTES, WS_LN2F)
    k.sconst2(24, R2)
    C5 = k.consts5(26)
    sC = ln_consts(k, 52)
    e("v_mul_u32_u24 v5, %d, v8" % P3)
    e("v_sub_u32 v6, 400, v9")
    e("v_lshl_add_u32 v6, v6, 3, v5")
    e("v_lshl_add_u32 v5, v9, 3, v5")
    e("v_add_u32 v7, %d, v6" % (3 * 640))
    e("v_cndmask_b32 v7, v7, v5, vcc")
    e("s_cmp_ge_u32 s3, 4")
    e("s_cbranch_scc1 K3_w4")
    e("s_waitcnt vmcnt(36)")
    e("s_branch K3_wj")
    k.label("K3_w4")
    e("s_waitcnt vmcnt(7)")
    k.label("K3_wj")
    k.stamp(1)
    for i in range(4):
        a_, b_ = X[2 * i], X[2 * i + 1]
        if i == 0:
            e("v_cndmask_b32 v%d, v%d, 0, vcc" % (a_ + 1, a_ + 1))
            e("v_cndmask_b32 v%d, v%d, 0, vcc" % (b_ + 1, b_ + 1))
        e("v_pk_add_f32 %s, %s, %s op_sel:[0,1] op_sel_hi:[1,0] neg_lo:[0,1]" % (vp(T[2 * i]), vp(a_), vp(b_)))
        e("v_pk_add_f32 %s, %s, %s op_sel:[0,1] op_sel_hi:[1,0] neg_hi:[1,0]" % (vp(T[2 * i + 1]), vp(a_), vp(b_)))
        if i == 0:
            e("ds_write_b64 v7, %s" % vp(T[1]))
        else:
            e("ds_write_b64 v6, %s offset:%d" % (vp(T[2 * i + 1]), (3 - i) * 640))
        e("ds_write_b64 v5, %s offset:%d" % (vp(T[2 * i]), i * 640))
    e("s_cmp_lg_u32 s3, 0")
    e("s_cbranch_scc1 K3_no320b")
    e("s_and_saveexec_b64 s[34:35], vcc")
    e("v_mov_b32 v%d, v%d" % (E320 + 1, E320 + 2))
    e("ds_write_b64 v5, %s offset:%d" % (vp(E320), 320 * 8))
    e("s_mov_b64 exec, s[34:35]")
    k.label("K3_no320b")
    X8 = X[:8]
    T8 = T[:8]
    e("v_mul_u32_u24 v6, 205, v3")
    e("v_lshrrev_b32 v6, 11, v6")
    e("v_mul_u32_u24 v7, 10, v6")
    e("v_sub_u32 v7, v3, v7")
    e("v_mul_u32_u24 v8, 10, v4")
    e("v_add_u32 v7, v7, v8")
    e("v_lshlrev_b32 v7, 3, v7")
    e("v_mul_u32_u24 v6, %d, v6" % P3)
    e("v_add_u32 v7, v7, v6")
    e("v_mul_u32_u24 v5, %d, v3" % P1)
    e("v_lshl_add_u32 v6, v4, 6, v5")
    e("v_lshl_add_u32 v5, v4, 3, v5")
    e("s_waitcnt lgkmcnt(0)")
    e("s_barrier")
    k.stamp(2)
    for q3 in range(8):
        e("ds_read_b64 %s, v7 offset:%d" % (vp(X8[q3]), q3 * 640))
    e("s_waitcnt lgkmcnt(0)")
    k.fft8(X8, T8, 24, True)
    e("s_cmp_ge_u32 s3, 4")
    e("s_cbranch_scc1 K3_w4b")
    e("s_waitcnt vmcnt(29)")
    e("s_branch K3_wjb")
    k.label("K3_w4b")
    e("s_waitcnt vmcnt(0)")
    k.label("K3_wjb")
    for n1 in range(1, 8):
        k.cmul(T8[n1], T8[n1], TW2[n1 - 1], X8[n1], conj=True)
    for j in range(4):
        e("ds_write_b128 v6, %s offset:%d" % (vq(T8[2 * j]), A2BASE + j * 16))
    e("s_waitcnt lgkmcnt(0)")
    e("s_barrier")
    k.stamp(3)
    for q2 in range(8):
        e("ds_read_b64 %s, v5 offset:%d" % (vp(X8[q2]), A2BASE + q2 * 64))
    e("s_waitcnt lgkmcnt(0)")
    k.fft8(X8, T8, 24, True)
    for j in range(8):
        e("ds_write_b64 v5, %s offset:%d" % (vp(T8[j]), j * 64))
    e("s_waitcnt lgkmcnt(0)")
    e("s_barrier")
    k.stamp(4)
    e("s_cmp_ge_u32 s3, 4")
    e("s_cbranch_scc1 K3_end")
    e("s_mul_i32 s40, s3, %d" % (10 * P1))
    e("v_lshlrev_b32 v5, 3, v1")
    e("v_add_u32 v5, s40, v5")
    for q1 in range(10):
        e("ds_read_b64 %s, v5 offset:%d" % (vp(X[q1]), q1 * P1))
    e("s_waitcnt vmcnt(0) lgkmcnt(0)")
    for q1 in range(1, 10):
        k.cmul(X[q1], X[q1], TW1[q1 - 1], T[q1], conj=True)
    R = k.fft10(X, T, C5, True)
    U = TMP[7]
    e("v_lshlrev_b32 v5, 2, v1")
    e("s_lshr_b32 s40, s39, 1")
    e("s_mul_i32 s40, s40, 2560")
    for j in range(10):
        y = R[j]
        h = XR[j]
        e("v_cvt_pk_bf16_f32 v%d, v%d, v%d" % (U, y, y + 1))
        e("v_lshlrev_b32 v%d, 16, v%d" % (h, h))
        e("v_lshlrev_b32 v%d, 16, v%d" % (h + 1, h + 1))
        e("v_lshlrev_b32 v%d, 16, v%d" % (y, U))
        e("v_and_b32 v%d, 0xffff0000, v%d" % (y + 1, U))
        e("v_pk_add_f32 %s, %s, %s" % (vp(h), vp(h), vp(y)))
        e("v_cvt_pk_bf16_f32 v%d, v%d, v%d" % (y, h, h + 1))
        e("v_lshlrev_b32 v%d, 16, v%d" % (h, y))
        e("v_and_b32 v%d, 0xffff0000, v%d" % (h + 1, y))
        e("buffer_store_dword v%d, v5, s[44:47], s40 offen offset:%d" % (y, j * 256))
    layernorm_pk(k, XR, TMP, sC)
    e("v_lshrrev_b32 v6, 4, v1")
    e("v_lshlrev_b32 v6, 10, v6")
    e("v_lshrrev_b32 v7, 3, v1")
    e("v_and_b32 v7, 1, v7")
    e("v_lshl_add_u32 v6, v7, 9, v6")
    e("v_and_b32 v7, 7, v1")
    e("v_lshl_add_u32 v6, v7, 1, v6")
    e("s_lshr_b32 s40, s39, 5")
    e("s_mul_i32 s40, s40, 40960")
    e("s_and_b32 s41, s39, 31")
    e("s_lshl_b32 s41, s41, 4")
    e("s_add_u32 s40, s40, s41")
    for j in range(10):
        o = XR[j]
        e("buffer_store_short v%d, v6, s[48:51], s40 offen" % o)
        e("buffer_store_short_d16_hi v%d, v6, s[48:51], s40 offen offset:16" % o)
        if j < 9:
            e("s_add_u32 s40, s40, 4096")
    k.stamp_flush(5)
    k.label("K3_end")
    k.rt_end(2)
    e("s_endpgm")
    return k, 136


K4_LDS = 3 * 40960


def epi_pair_relu2(k, a0, a1, bias, t0, t1, p, dst):
    e = k.e
    e("v_cvt_pk_bf16_f32 v%d, v%d, v%d" % (p, a0, a1))
    e("v_lshlrev_b32 v%d, 16, v%d" % (a0, p))
    e("v_and_b32 v%d, 0xffff0000, v%d" % (a1, p))
    e("v_lshlrev_b32 v%d, 16, v%d" % (t0, bias))
    e("v_and_b32 v%d, 0xffff0000, v%d" % (t1, bias))
    e("v_pk_add_f32 %s, %s, %s" % (vp(a0), vp(a0), vp(t0)))
    e("v_cvt_pk_bf16_f32 v%d, v%d, v%d" % (p, a0, a1))
    e("v_lshlrev_b32 v%d, 16, v%d" % (a0, p))
    e("v_and_b32 v%d, 0xffff0000, v%d" % (a1, p))
    e("v_max_f32 v%d, 0, v%d" % (a0, a0))
    e("v_max_f32 v%d, 0, v%d" % (a1, a1))
    e("v_pk_mul_f32 %s, %s, %s" % (vp(a0), vp(a0), vp(a0)))
    e("v_cvt_pk_bf16_f32 v%d, v%d, v%d" % (dst, a0, a1))


def gen_k4():
    k = K()
    kernel_header(k, "k4_kernel")
    k.rt_begin()
    e = k.e
    e("s_load_dwordx2 s[4:5], s[0:1], 40")
    e("s_load_dwordx2 s[6:7], s[0:1], 80")
    e("v_lshrrev_b32 v2, 6, v0")
    e("v_and_b32 v1, 63, v0")
    e("s_nop 0")
    e("v_readfirstlane_b32 s3, v2")
    e("s_waitcnt lgkmcnt(0)")
    k.stamp(0)
    e("s_cmp_ge_u32 s2, 256")
    e("s_cbranch_scc1 K4_end")
    k.srd(12, 6, H_BYTES, WS_LN2F)
    k.srd(16, 6, WF_BYTES, WS_W1F)
    e("s_and_b32 s8, s2, 3")
    e("s_lshl_b32 s8, s8, 2")
    e("s_lshr_b32 s9, s2, 3")
    e("s_and_b32 s10, s9, 3")
    e("s_add_u32 s8, s8, s10")
    e("s_lshr_b32 s9, s9, 2")
    e("s_lshr_b32 s10, s2, 2")
    e("s_and_b32 s10, s10, 1")
    e("s_lshl_b32 s10, s10, 3")
    e("s_add_u32 s9, s9, s10")
    e("s_lshl_b32 s8, s8, 2")
    e("s_add_u32 s8, s8, s3")
    e("s_mul_i32 s10, s8, 40960")
    e("s_mul_i32 s11, s9, %d" % (3 * 40960))
    e("s_lshl_b32 s28, s3, 11")
    e("v_lshlrev_b32 v2, 4, v1")
    ACC = 16
    BF = 64
    AB = [224, 236]

    def issue_chunk(c):
        for i in range(3):
            e("s_add_u32 s29, s28, %d" % (i * 40960 + c * 8192))
            e("s_add_u32 s30, s29, s11")
            e("s_mov_b32 m0, s29")
            e("s_nop 0")
            k.vm("buffer_load_dwordx4 v2, s[16:19], s30 offen lds", "c%d" % c)
            k.vm("buffer_load_dwordx4 v2, s[16:19], s30 offen offset:1024 lds", "c%d" % c)
        for s in range(8):
            if s % 4 == 0:
                e("s_add_u32 s31, s10, %d" % ((8 * c + s) * 1024))
            k.vm("buffer_load_dwordx4 %s, v2, s[12:15], s31 offen offset:%d" % (vq(BF + (8 * c + s) * 4), (s % 4) * 1024), "c%d" % c)

    def areads(slab, buf):
        for i in range(3):
            e("ds_read_b128 %s, v%d offset:%d" % (vq(AB[buf] + 4 * i), 2 + i, slab * 1024))

    for c in range(4):
        issue_chunk(c)
    k.srd(20, 6, HF_BYTES, WS_HF)
    k.srd(24, 4, 3072)
    e("v_add_u32 v3, 40960, v2")
    e("v_add_u32 v4, 81920, v2")
    for i in range(48):
        e("v_mov_b32 v%d, 0" % (ACC + i))
    for c in range(5):
        k.vmwait("c%d" % c)
        e("s_barrier")
        if c in (0, 1, 2, 4):
            k.stamp(1 + (0, 1, 2, 0, 3)[c])
        if c == 0:
            issue_chunk(4)
        if c == 1:
            e("v_lshrrev_b32 v5, 5, v1")
            e("v_lshlrev_b32 v5, 3, v5")
            e("s_mul_i32 s32, s9, 192")
            for i in range(3):
                for g in range(4):
                    k.vm("buffer_load_dwordx2 %s, v5, s[24:27], s32 offen offset:%d" % (vp(BF + (i * 4 + g) * 2), i * 64 + g * 16), "bias")
        areads(8 * c, 0)
        for s in range(8):
            slab = 8 * c + s
            buf = s % 2
            if s < 7:
                areads(slab + 1, 1 - buf)
                e("s_waitcnt lgkmcnt(3)")
            else:
                e("s_waitcnt lgkmcnt(0)")
            for i in range(3):
                e("v_mfma_f32_32x32x16_bf16 v[%d:%d], %s, %s, v[%d:%d]" % (
                    ACC + 16 * i, ACC + 16 * i + 15, vq(AB[buf] + 4 * i), vq(BF + slab * 4), ACC + 16 * i, ACC + 16 * i + 15))
    e("v_lshrrev_b32 v9, 4, v1")
    e("v_and_b32 v9, 1, v9")
    e("v_mul_u32_u24 v9, 49152, v9")
    e("v_and_b32 v10, 15, v1")
    e("v_lshl_add_u32 v9, v10, 4, v9")
    e("v_lshrrev_b32 v10, 5, v1")
    e("v_lshl_add_u32 v9, v10, 8, v9")
    e("s_mul_i32 s32, s8, 96")
    e("s_mul_i32 s33, s9, 3")
    e("s_add_u32 s32, s32, s33")
    e("s_lshl_b32 s32, s32, 10")
    k.vmwait("bias")
    k.stamp(5)
    k.nop(16)
    PK = 100
    for i in range(3):
        for gp in range(2):
            for g in (2 * gp, 2 * gp + 1):
                for hp in range(2):
                    a = ACC + 16 * i + 4 * g + 2 * hp
                    epi_pair_relu2(k, a, a + 1, BF + (i * 4 + g) * 2 + hp, 6, 7, 8, PK + i * 8 + g * 2 + hp)
            e("buffer_store_dwordx4 %s, v9, s[20:23], s32 offen offset:%d" % (vq(PK + i * 8 + gp * 4), i * 1024 + gp * 512))
    k.stamp_flush(6)
    k.label("K4_end")
    k.rt_end(3)
    e("s_endpgm")
    return k, 248


K5_SLOTS = 6
K5_LDS = K5_SLOTS * 20480


def gen_k5():
    k = K()
    kernel_header(k, "k5_kernel")
    k.rt_begin()
    e = k.e
    e("s_load_dwordx4 s[4:7], s[0:1], 56")
    e("s_load_dwordx2 s[8:9], s[0:1], 80")
    e("v_lshrrev_b32 v2, 6, v0")
    e("v_and_b32 v1, 63, v0")
    e("s_nop 0")
    e("v_readfirstlane_b32 s3, v2")
    e("s_waitcnt lgkmcnt(0)")
    k.stamp(0)
    e("s_cmp_ge_u32 s2, 256")
    e("s_cbranch_scc1 K5_end")
    k.srd(12, 8, HF_BYTES, WS_HF)
    k.srd(16, 8, WF_BYTES, WS_W2F)
    k.srd(36, 8, H_BYTES, WS_H)
    e("s_and_b32 s8, s2, 3")
    e("s_lshl_b32 s8, s8, 3")
    e("s_lshr_b32 s9, s2, 3")
    e("s_and_b32 s10, s9, 7")
    e("s_add_u32 s8, s8, s10")
    e("s_lshr_b32 s9, s9, 3")
    e("s_lshr_b32 s10, s2, 2")
    e("s_and_b32 s10, s10, 1")
    e("s_lshl_b32 s10, s10, 2")
    e("s_add_u32 s9, s9, s10")
    e("s_lshl_b32 s8, s8, 2")
    e("s_add_u32 s8, s8, s3")
    e("s_mul_i32 s10, s8, %d" % (48 * 1024))
    e("s_mul_i32 s11, s9, %d" % (240 * 1024))
    e("s_mul_i32 s28, s3, 5120")
    e("v_lshlrev_b32 v2, 4, v1")
    ACC = 16
    AB = [36, 56]
    BF = 76
    EP = 176
    NCH = 12
    PD = K5_SLOTS - 1

    def dma(c):
        slot = c % K5_SLOTS
        e("s_add_u32 s29, s28, %d" % (slot * 20480))
        e("s_add_u32 s30, s28, %d" % (c * 20480))
        e("s_add_u32 s30, s30, s11")
        e("s_mov_b32 m0, s29")
        e("s_nop 0")
        for i in range(4):
            k.vm("buffer_load_dwordx4 v2, s[16:19], s30 offen offset:%d lds" % (i * 1024), "d%d" % c)
        e("s_add_u32 s29, s29, 4096")
        e("s_add_u32 s30, s30, 4096")
        e("s_mov_b32 m0, s29")
        e("s_nop 0")
        k.vm("buffer_load_dwordx4 v2, s[16:19], s30 offen lds", "d%d" % c)

    def bl(c):
        st = c % K5_SLOTS
        e("s_add_u32 s31, s10, %d" % (4 * c * 1024))
        for s in range(4):
            k.vm("buffer_load_dwordx4 %s, v2, s[12:15], s31 offen offset:%d" % (vq(BF + st * 16 + s * 4), s * 1024), "b%d" % c)

    def areads(c, s, buf):
        slot = c % K5_SLOTS
        vb, off = (2, slot * 20480) if slot < 3 else (3, (slot - 3) * 20480)
        for i in range(5):
            e("ds_read_b128 %s, v%d offset:%d" % (vq(AB[buf] + 4 * i), vb, off + s * 5120 + i * 1024))

    for c in range(PD):
        dma(c)
        bl(c)
    k.srd(20, 6, H_BYTES)
    k.srd(24, 4, 1280)
    e("v_add_u32 v3, 61440, v2")
    for i in range(20):
        e("v_mov_b32 v%d, 0" % (ACC + i))
    for c in range(NCH):
        k.vmwait("d%d" % c, "b%d" % c)
        e("s_barrier")
        if c in (0, 1, 2, 4):
            k.stamp(1 + (0, 1, 2, 0, 3)[c])
        if c + PD < NCH:
            dma(c + PD)
            bl(c + PD)
        if c == NCH - PD:
            e("v_and_b32 v5, 15, v1")
            e("s_lshl_b32 s32, s8, 4")
            e("v_add_u32 v5, s32, v5")
            e("v_lshrrev_b32 v6, 4, v1")
            e("v_lshrrev_b32 v7, 1, v5")
            e("v_mul_u32_u24 v7, 2560, v7")
            e("v_lshl_add_u32 v7, v6, 4, v7")
            e("v_lshlrev_b32 v8, 3, v6")
            e("v_mul_u32_u24 v9, 1280, v5")
            e("v_add_u32 v9, v9, v8")
            e("v_and_b32 v10, 1, v5")
            e("v_lshlrev_b32 v10, 4, v10")
            e("s_mul_i32 s33, s9, 320")
            e("s_mul_i32 s34, s9, 160")
            for i in range(5):
                k.vm("buffer_load_dwordx4 %s, v7, s[36:39], s33 offen offset:%d" % (vq(EP + 4 * i), i * 64), "ep")
                k.vm("buffer_load_dwordx2 %s, v8, s[24:27], s34 offen offset:%d" % (vp(EP + 20 + 2 * i), i * 32), "ep")
        st = c % K5_SLOTS
        areads(c, 0, 0)
        for s in range(4):
            buf = s % 2
            if s < 3:
                areads(c, s + 1, 1 - buf)
                e("s_waitcnt lgkmcnt(5)")
            else:
                e("s_waitcnt lgkmcnt(0)")
            for i in range(5):
                e("v_mfma_f32_16x16x32_bf16 v[%d:%d], %s, %s, v[%d:%d]" % (
                    ACC + 4 * i, ACC + 4 * i + 3, vq(AB[buf] + 4 * i), vq(BF + st * 16 + s * 4), ACC + 4 * i, ACC + 4 * i + 3))
    k.vmwait("ep")
    k.stamp(5)
    k.nop(10)
    t0, t1, p = 12, 13, 14
    for i in range(5):
        for hp in range(2):
            a0 = ACC + 4 * i + 2 * hp
            a1 = a0 + 1
            bias = EP + 20 + 2 * i + hp
            h0 = EP + 4 * i + 2 * hp
            h1 = h0 + 1
            e("v_cvt_pk_bf16_f32 v%d, v%d, v%d" % (p, a0, a1))
            e("v_lshlrev_b32 v%d, 16, v%d" % (a0, p))
            e("v_and_b32 v%d, 0xffff0000, v%d" % (a1, p))
            e("v_lshlrev_b32 v%d, 16, v%d" % (t0, bias))
            e("v_and_b32 v%d, 0xffff0000, v%d" % (t1, bias))
            e("v_pk_add_f32 %s, %s, %s" % (vp(a0), vp(a0), vp(t0)))
            e("v_cvt_pk_bf16_f32 v%d, v%d, v%d" % (p, a0, a1))
            e("v_lshlrev_b32 v%d, 16, v%d" % (a0, p))
            e("v_and_b32 v%d, 0xffff0000, v%d" % (a1, p))
            e("v_lshrrev_b32 v%d, v10, v%d" % (t0, h0))
            e("v_lshrrev_b32 v%d, v10, v%d" % (t1, h1))
            e("v_lshlrev_b32 v%d, 16, v%d" % (t0, t0))
            e("v_lshlrev_b32 v%d, 16, v%d" % (t1, t1))
            e("v_pk_add_f32 %s, %s, %s" % (vp(a0), vp(a0), vp(t0)))
            e("v_cvt_pk_bf16_f32 v%d, v%d, v%d" % (bias, a0, a1))
        e("buffer_store_dwordx2 %s, v9, s[20:23], s34 offen offset:%d" % (vp(EP + 20 + 2 * i), i * 32))
    k.stamp_flush(6)
    k.label("K5_end")
    k.rt_end(4)
    e("s_endpgm")
    return k, 208


def table(name, n):
    out = [".p2align 8", ".type %s,@object" % name, "%s:" % name]
    for i in range(n):
        a = -2.0 * math.pi * i / n
        out.append("    .long 0x%08x, 0x%08x" % (f2u(math.cos(a)), f2u(math.sin(a))))
    out.append(".size %s, %d" % (name, n * 8))
    return out


def main():
    ref = open(REF).read().splitlines()
    head = [l for l in ref if l.startswith(";") and "@launch" not in l and "Override" not in l and "grid=ceil" not in l]
    k1, v1 = gen_k1()
    k2, v2 = gen_k2()
    k3, v3 = gen_k3()
    k4, v4 = gen_k4()
    k5, v5 = gen_k5()
    L = list(head)
    L.append("; @launch kernel=k1_kernel grid=(%d,1,1) block=(320,1,1) lds=%d" % (K1_MAIN + K1_HELP, 2 * A2BASE))
    L.append("; @launch kernel=k2_kernel grid=(%d,1,1) block=(256,1,1) lds=%d" % (K2_MAIN + K2_HELP, K2_LDS))
    L.append("; @launch kernel=k3_kernel grid=(256,1,1) block=(320,1,1) lds=%d" % (2 * A2BASE))
    L.append("; @launch kernel=k4_kernel grid=(256,1,1) block=(256,1,1) lds=%d" % K4_LDS)
    L.append("; @launch kernel=k5_kernel grid=(256,1,1) block=(256,1,1) lds=%d" % K5_LDS)
    L.append('.amdgcn_target "amdgcn-amd-amdhsa--gfx950"')
    L.append(".text")
    for kk in (k1, k2, k3, k4, k5):
        L += kk.L
    L += table("tw640", 640)
    L += table("tw2048", 2048)
    L.append('.section .rodata,"a"')
    L.append(".p2align 6")
    for nm, v in (("k1_kernel", v1), ("k2_kernel", v2), ("k3_kernel", v3), ("k4_kernel", v4), ("k5_kernel", v5)):
        L.append(kernel_desc(nm, v))
    open(OUT, "w").write("\n".join(L) + "\n")
    print("wrote", OUT, len(L), "lines")


if __name__ == "__main__":
    main()
```

```python
import math, struct, sys

NAME = "sequential_preLN__spectral_gfnet__dense_activation_squared_relu__prompt"
OUT = "cdna_kernels/%s.s" % NAME
REF = OUT + ".ref"
if len(sys.argv) > 1 and sys.argv[1] == "stamp":
    OUT = "stamp.s"

WS_X1 = 0x0000000
WS_WT = 0x0600000
WS_H = 0x0A00000
WS_LN2F = 0x0D00000
WS_HF = 0x1000000
WS_W1F = 0x1800000
WS_W2F = 0x1A00000
X1_BYTES = 322 * 2048 * 8
WT_BYTES = 322 * 2048 * 4
H_BYTES = 2048 * 640 * 2
HF_BYTES = 2048 * 1536 * 2
WF_BYTES = 640 * 1536 * 2


def f2u(x):
    return struct.unpack("<I", struct.pack("<f", x))[0]


def vp(i):
    assert i % 2 == 0, i
    return "v[%d:%d]" % (i, i + 1)


def vq(i):
    assert i % 2 == 0, i
    return "v[%d:%d]" % (i, i + 3)


def sp(i):
    assert i % 2 == 0
    return "s[%d:%d]" % (i, i + 1)


def sq(i):
    assert i % 4 == 0
    return "s[%d:%d]" % (i, i + 3)


UID = 0
STAMP = len(sys.argv) > 1 and sys.argv[1] == 'stamp'


class K:
    def __init__(self):
        self.L = []
        self.q = []
        self.uid = 0

    def e(self, s):
        self.L.append("    " + s)

    def label(self, l):
        self.L.append(l + ":")

    def newlabel(self, base):
        global UID
        UID += 1
        return "L_%s_%d" % (base, UID)

    def vm(self, s, tag):
        self.e(s)
        self.q.append(tag)

    def vmwait(self, *tags):
        last = -1
        for i, t in enumerate(self.q):
            if t in tags:
                last = i
        assert last >= 0, tags
        n = len(self.q) - 1 - last
        assert n <= 63
        self.e("s_waitcnt vmcnt(%d)" % n)
        self.q = self.q[last + 1:]

    def vmreset(self):
        self.q = []

    def nop(self, n):
        while n > 0:
            m = min(n, 16)
            self.e("s_nop %d" % (m - 1))
            n -= m

    def stamp(self, i):
        if not STAMP:
            return
        self.e("s_waitcnt lgkmcnt(0)")
        self.e("s_memtime s[%d:%d]" % (70 + 2 * i, 71 + 2 * i))
        self.e("s_waitcnt lgkmcnt(0)")

    def rt_begin(self):
        if not STAMP:
            return
        self.e("s_memrealtime s[96:97]")

    def rt_end(self, kid):
        if not STAMP:
            return
        self.e("s_waitcnt vmcnt(0) lgkmcnt(0)")
        self.e("s_memrealtime s[98:99]")
        self.e("s_load_dwordx2 s[64:65], s[0:1], 80")
        self.e("s_waitcnt lgkmcnt(0)")
        self.e("s_mov_b64 exec, -1")
        self.e("s_add_u32 s60, s64, 0x%x" % (0x3000000 + kid * 0x10000))
        self.e("s_addc_u32 s61, s65, 0")
        self.e("s_and_b32 s61, s61, 0xffff")
        self.e("s_mov_b32 s62, 0x10000")
        self.e("s_mov_b32 s63, 0x20000")
        self.e("s_lshl_b32 s66, s2, 5")
        self.e("s_lshl_b32 s67, s3, 2")
        self.e("s_add_u32 s66, s66, s67")
        self.e("v_mov_b32 v0, 0")
        self.e("v_mov_b32 v1, s96")
        self.e("v_mov_b32 v2, s98")
        self.e("s_cmp_ge_u32 s3, 4")
        l2 = self.newlabel("rt")
        self.e("s_cbranch_scc1 %s" % l2)
        self.e("buffer_store_dword v1, v0, s[60:63], s66 offen")
        self.e("buffer_store_dword v2, v0, s[60:63], s66 offen offset:16")
        self.label(l2)

    def stamp_flush(self, n):
        if not STAMP:
            return
        l = self.newlabel("st")
        self.e("s_waitcnt vmcnt(0) lgkmcnt(0)")
        self.e("s_memtime s[%d:%d]" % (70 + 2 * n, 71 + 2 * n))
        self.e("s_load_dwordx2 s[64:65], s[0:1], 72")
        self.e("s_waitcnt lgkmcnt(0)")
        self.e("s_mov_b64 exec, -1")
        self.e("s_and_b32 s66, s2, 63")
        self.e("s_cmp_lg_u32 s66, 5")
        self.e("s_cbranch_scc1 %s" % l)
        self.e("s_cmp_lg_u32 s3, 0")
        self.e("s_cbranch_scc1 %s" % l)
        self.e("s_lshr_b32 s66, s2, 6")
        self.e("s_lshl_b32 s66, s66, 6")
        self.e("s_and_b32 s65, s65, 0xffff")
        self.e("s_mov_b32 s66, s66")
        self.e("s_mov_b32 s62, s64")
        self.e("s_mov_b32 s63, s65")
        self.e("s_mov_b32 s60, s64")
        self.e("s_mov_b32 s61, s65")
        self.e("s_mov_b32 s62, 256")
        self.e("s_mov_b32 s63, 0x20000")
        self.e("v_mov_b32 v0, 0")
        for i in range(n + 1):
            self.e("s_sub_u32 s67, s%d, s70" % (70 + 2 * i))
            self.e("v_mov_b32 v1, s67")
            self.e("buffer_store_dword v1, v0, s[60:63], s66 offen offset:%d" % (4 * i))
            self.e("s_nop 1")
        self.label(l)

    def srd(self, d, base, nbytes, add=0):
        self.e("s_add_u32 s%d, s%d, 0x%x" % (d, base, add))
        self.e("s_addc_u32 s%d, s%d, 0" % (d + 1, base + 1))
        self.e("s_and_b32 s%d, s%d, 0xffff" % (d + 1, d + 1))
        self.e("s_mov_b32 s%d, 0x%x" % (d + 2, nbytes))
        self.e("s_mov_b32 s%d, 0x20000" % (d + 3))

    def srd_table(self, d, label, nbytes):
        l = self.newlabel("pc")
        self.e("s_getpc_b64 %s" % sp(d))
        self.label(l)
        self.e("s_add_u32 s%d, s%d, %s - %s" % (d, d, label, l))
        self.e("s_addc_u32 s%d, s%d, 0" % (d + 1, d + 1))
        self.e("s_and_b32 s%d, s%d, 0xffff" % (d + 1, d + 1))
        self.e("s_mov_b32 s%d, 0x%x" % (d + 2, nbytes))
        self.e("s_mov_b32 s%d, 0x20000" % (d + 3))

    def sconst2(self, d, val):
        self.e("s_mov_b32 s%d, 0x%08x" % (d, f2u(val)))
        self.e("s_mov_b32 s%d, 0x%08x" % (d + 1, f2u(val)))

    def cadd(self, d, a, b):
        self.e("v_pk_add_f32 %s, %s, %s" % (vp(d), vp(a), vp(b)))

    def csub(self, d, a, b):
        self.e("v_pk_add_f32 %s, %s, %s neg_lo:[0,1] neg_hi:[0,1]" % (vp(d), vp(a), vp(b)))

    def cadd_i(self, d, a, b, sign):
        if sign > 0:
            self.e("v_pk_add_f32 %s, %s, %s op_sel:[0,1] op_sel_hi:[1,0] neg_lo:[0,1]" % (vp(d), vp(a), vp(b)))
        else:
            self.e("v_pk_add_f32 %s, %s, %s op_sel:[0,1] op_sel_hi:[1,0] neg_hi:[0,1]" % (vp(d), vp(a), vp(b)))

    def cfma_s(self, d, a, s, c, neg=False):
        m = " neg_lo:[1,0,0] neg_hi:[1,0,0]" if neg else ""
        self.e("v_pk_fma_f32 %s, %s, %s, %s%s" % (vp(d), vp(a), sp(s), vp(c), m))

    def cmul_s(self, d, a, s):
        self.e("v_pk_mul_f32 %s, %s, %s" % (vp(d), vp(a), sp(s)))

    def cfma_si(self, d, a, s, c, sign):
        if sign > 0:
            m = "neg_lo:[1,0,0]"
        else:
            m = "neg_hi:[1,0,0]"
        self.e("v_pk_fma_f32 %s, %s, %s, %s op_sel:[1,0,0] op_sel_hi:[0,1,1] %s" % (vp(d), vp(a), sp(s), vp(c), m))

    def cmul(self, d, x, w, t, conj=False):
        self.e("v_pk_mul_f32 %s, %s, %s op_sel:[0,0] op_sel_hi:[1,0]" % (vp(t), vp(x), vp(w)))
        m = "neg_hi:[1,0,0]" if conj else "neg_lo:[1,0,0]"
        self.e("v_pk_fma_f32 %s, %s, %s, %s op_sel:[1,1,0] op_sel_hi:[0,1,1] %s" % (vp(d), vp(x), vp(w), vp(t), m))

    def fft8(self, X, T, sR, inv):
        sg = 1 if inv else -1
        for j in range(4):
            self.cadd(T[j], X[j], X[j + 4])
            self.csub(T[j + 4], X[j], X[j + 4])
        b0, b1, b2, b3, u5, u7, d0, d1 = X
        self.cadd(b0, T[0], T[2])
        self.csub(b1, T[0], T[2])
        self.cadd(b2, T[1], T[3])
        self.csub(b3, T[1], T[3])
        a5, a7 = T[5], T[7]
        if not inv:
            self.e("v_pk_add_f32 %s, %s, %s op_sel:[0,1] op_sel_hi:[1,0] neg_hi:[0,1]" % (vp(u5), vp(a5), vp(a5)))
            self.e("v_pk_add_f32 %s, %s, %s op_sel:[0,1] op_sel_hi:[1,0] neg_lo:[1,0] neg_hi:[1,1]" % (vp(u7), vp(a7), vp(a7)))
        else:
            self.e("v_pk_add_f32 %s, %s, %s op_sel:[0,1] op_sel_hi:[1,0] neg_lo:[0,1]" % (vp(u5), vp(a5), vp(a5)))
            self.e("v_pk_add_f32 %s, %s, %s op_sel:[0,1] op_sel_hi:[1,0] neg_lo:[1,1] neg_hi:[1,0]" % (vp(u7), vp(a7), vp(a7)))
        self.cadd_i(d0, T[4], T[6], sg)
        self.cadd_i(d1, T[4], T[6], -sg)
        d2u, d3u = T[5], T[7]
        self.cadd(d2u, u5, u7)
        self.csub(d3u, u5, u7)
        self.cadd(T[0], b0, b2)
        self.csub(T[4], b0, b2)
        self.cadd_i(T[2], b1, b3, sg)
        self.cadd_i(T[6], b1, b3, -sg)
        self.cfma_s(T[1], d2u, sR, d0)
        self.cfma_s(T[5], d2u, sR, d0, neg=True)
        self.cfma_si(T[3], d3u, sR, d1, sg)
        self.cfma_si(T[7], d3u, sR, d1, -sg)

    def fft4(self, X, T, inv):
        sg = 1 if inv else -1
        self.cadd(T[0], X[0], X[2])
        self.csub(T[1], X[0], X[2])
        self.cadd(T[2], X[1], X[3])
        self.csub(T[3], X[1], X[3])
        self.cadd(X[0], T[0], T[2])
        self.csub(X[2], T[0], T[2])
        self.cadd_i(X[1], T[1], T[3], sg)
        self.cadd_i(X[3], T[1], T[3], -sg)

    def dft5(self, Y, X, C, inv):
        sg = 1 if inv else -1
        t1, t2, t3, t4, s, a, b, c, d = X[:9]
        self.cadd(t1, Y[1], Y[4])
        self.cadd(t2, Y[2], Y[3])
        self.csub(t3, Y[1], Y[4])
        self.csub(t4, Y[2], Y[3])
        self.cfma_s(a, t1, C['c1'], Y[0])
        self.cfma_s(b, t1, C['c2'], Y[0])
        self.cmul_s(c, t3, C['s1'])
        self.cmul_s(d, t3, C['s2'])
        self.cadd(s, t1, t2)
        self.cfma_s(a, t2, C['c2'], a)
        self.cfma_s(b, t2, C['c1'], b)
        self.cfma_s(c, t4, C['s2'], c)
        self.cfma_s(d, t4, C['s1'], d, neg=True)
        self.cadd(Y[0], Y[0], s)
        self.cadd_i(Y[1], a, c, sg)
        self.cadd_i(Y[4], a, c, -sg)
        self.cadd_i(Y[2], b, d, sg)
        self.cadd_i(Y[3], b, d, -sg)

    def fft10(self, X, T, C, inv):
        for n2 in range(5):
            i0 = (2 * n2) % 10
            i1 = (5 + 2 * n2) % 10
            self.cadd(T[n2], X[i0], X[i1])
            self.csub(T[5 + n2], X[i0], X[i1])
        self.dft5(T[0:5], X, C, inv)
        self.dft5(T[5:10], X, C, inv)
        R = [None] * 10
        for k2 in range(5):
            R[(6 * k2) % 10] = T[k2]
            R[(5 + 6 * k2) % 10] = T[5 + k2]
        return R

    def consts5(self, base):
        C = {'c1': base, 'c2': base + 2, 's1': base + 4, 's2': base + 6}
        self.sconst2(C['c1'], math.cos(2 * math.pi / 5))
        self.sconst2(C['c2'], math.cos(4 * math.pi / 5))
        self.sconst2(C['s1'], math.sin(2 * math.pi / 5))
        self.sconst2(C['s2'], math.sin(4 * math.pi / 5))
        return C

    def allreduce2(self, a, b, ta, tb):
        for perm in ("quad_perm:[1,0,3,2]", "quad_perm:[2,3,0,1]", "row_half_mirror", "row_mirror"):
            self.nop(2)
            self.e("v_add_f32_dpp v%d, v%d, v%d %s row_mask:0xf bank_mask:0xf" % (a, a, a, perm))
            self.e("v_add_f32_dpp v%d, v%d, v%d %s row_mask:0xf bank_mask:0xf" % (b, b, b, perm))
        for sw in ("v_permlane16_swap_b32", "v_permlane32_swap_b32"):
            self.e("v_mov_b32 v%d, v%d" % (ta, a))
            self.e("v_mov_b32 v%d, v%d" % (tb, b))
            self.nop(2)
            self.e("%s v%d, v%d" % (sw, a, ta))
            self.e("%s v%d, v%d" % (sw, b, tb))
            self.nop(1)
            self.e("v_add_f32 v%d, v%d, v%d" % (a, a, ta))
            self.e("v_add_f32 v%d, v%d, v%d" % (b, b, tb))

    def div640(self, d, s, t, sInv, s640):
        self.e("v_mul_f32 v%d, s%d, v%d" % (d, sInv, s))
        self.e("v_fma_f32 v%d, -v%d, s%d, v%d" % (t, d, s640, s))
        self.e("v_fma_f32 v%d, v%d, s%d, v%d" % (d, t, sInv, d))

    def layernorm2(self, A, B, OUTP, tmp, sInv, s640, sEps):
        sa, sb, ta, tb, ma, mb, va, vb, ra, rb, p, d0, d1, e0 = tmp[:14]
        self.e("v_add_f32 v%d, v%d, v%d" % (sa, A[0], A[1]))
        self.e("v_add_f32 v%d, v%d, v%d" % (sb, B[0], B[1]))
        for j in range(2, 10):
            self.e("v_add_f32 v%d, v%d, v%d" % (sa, sa, A[j]))
            self.e("v_add_f32 v%d, v%d, v%d" % (sb, sb, B[j]))
        self.allreduce2(sa, sb, ta, tb)
        self.div640(ma, sa, ta, sInv, s640)
        self.div640(mb, sb, tb, sInv, s640)
        for j in range(10):
            self.e("v_sub_f32 v%d, v%d, v%d" % (d0, A[j], ma))
            self.e("v_sub_f32 v%d, v%d, v%d" % (d1, B[j], mb))
            if j == 0:
                self.e("v_mul_f32 v%d, v%d, v%d" % (sa, d0, d0))
                self.e("v_mul_f32 v%d, v%d, v%d" % (sb, d1, d1))
            else:
                self.e("v_fma_f32 v%d, v%d, v%d, v%d" % (sa, d0, d0, sa))
                self.e("v_fma_f32 v%d, v%d, v%d, v%d" % (sb, d1, d1, sb))
        self.allreduce2(sa, sb, ta, tb)
        self.div640(va, sa, ta, sInv, s640)
        self.div640(vb, sb, tb, sInv, s640)
        self.e("v_cvt_pk_bf16_f32 v%d, v%d, v%d" % (p, ma, mb))
        self.e("v_lshlrev_b32 v%d, 16, v%d" % (ma, p))
        self.e("v_and_b32 v%d, 0xffff0000, v%d" % (mb, p))
        self.e("v_cvt_pk_bf16_f32 v%d, v%d, v%d" % (p, va, vb))
        self.e("v_lshlrev_b32 v%d, 16, v%d" % (va, p))
        self.e("v_and_b32 v%d, 0xffff0000, v%d" % (vb, p))
        self.e("v_add_f32 v%d, s%d, v%d" % (va, sEps, va))
        self.e("v_add_f32 v%d, s%d, v%d" % (vb, sEps, vb))
        self.e("v_cvt_pk_bf16_f32 v%d, v%d, v%d" % (p, va, vb))
        self.e("v_lshlrev_b32 v%d, 16, v%d" % (va, p))
        self.e("v_and_b32 v%d, 0xffff0000, v%d" % (vb, p))
        self.e("v_sqrt_f32 v%d, v%d" % (va, va))
        self.e("v_sqrt_f32 v%d, v%d" % (vb, vb))
        self.nop(1)
        self.e("v_cvt_pk_bf16_f32 v%d, v%d, v%d" % (p, va, vb))
        self.e("v_lshlrev_b32 v%d, 16, v%d" % (va, p))
        self.e("v_and_b32 v%d, 0xffff0000, v%d" % (vb, p))
        self.e("v_rcp_f32 v%d, v%d" % (ra, va))
        self.e("v_rcp_f32 v%d, v%d" % (rb, vb))
        self.nop(1)
        for j in range(10):
            o = OUTP[j]
            self.e("v_sub_f32 v%d, v%d, v%d" % (d0, A[j], ma))
            self.e("v_sub_f32 v%d, v%d, v%d" % (d1, B[j], mb))
            self.e("v_cvt_pk_bf16_f32 v%d, v%d, v%d" % (p, d0, d1))
            self.e("v_lshlrev_b32 v%d, 16, v%d" % (d0, p))
            self.e("v_and_b32 v%d, 0xffff0000, v%d" % (d1, p))
            self.e("v_mul_f32 v%d, v%d, v%d" % (o, d0, ra))
            self.e("v_mul_f32 v%d, v%d, v%d" % (o + 1, d1, rb))
            self.e("v_fma_f32 v%d, -v%d, v%d, v%d" % (d0, o, va, d0))
            self.e("v_fma_f32 v%d, -v%d, v%d, v%d" % (d1, o + 1, vb, d1))
            self.e("v_fma_f32 v%d, v%d, v%d, v%d" % (o, d0, ra, o))
            self.e("v_fma_f32 v%d, v%d, v%d, v%d" % (o + 1, d1, rb, o + 1))
            self.e("v_cvt_pk_bf16_f32 v%d, v%d, v%d" % (p, o, o + 1))
            self.e("v_lshlrev_b32 v%d, 16, v%d" % (o, p))
            self.e("v_and_b32 v%d, 0xffff0000, v%d" % (o + 1, p))


def kernel_header(k, name):
    k.L.append(".p2align 8")
    k.L.append(".globl %s" % name)
    k.L.append(".type %s,@function" % name)
    k.label(name)


def kernel_desc(name, vgpr, sgpr=102):
    vg = (vgpr + 3) // 4 * 4
    return "\n".join([
        ".amdhsa_kernel %s" % name,
        "  .amdhsa_next_free_vgpr %d" % vgpr,
        "  .amdhsa_next_free_sgpr %d" % sgpr,
        "  .amdhsa_accum_offset %d" % vg,
        "  .amdhsa_group_segment_fixed_size 0",
        "  .amdhsa_kernarg_size 88",
        "  .amdhsa_user_sgpr_count 2",
        "  .amdhsa_user_sgpr_kernarg_segment_ptr 1",
        "  .amdhsa_system_sgpr_workgroup_id_x 1",
        ".end_amdhsa_kernel"])


R2 = 1.0 / math.sqrt(2.0)
P1 = 576
A2BASE = 40 * P1
P3 = 5248

def layernorm_pk(k, P, tmp, sC):
    e = k.e
    S, M, V, R, D, Q, TT, U = tmp[:8]
    e("v_pk_add_f32 %s, %s, %s" % (vp(S), vp(P[0]), vp(P[1])))
    for j in range(2, 10):
        e("v_pk_add_f32 %s, %s, %s" % (vp(S), vp(S), vp(P[j])))
    k.allreduce2(S, S + 1, TT, TT + 1)
    e("v_pk_mul_f32 %s, %s, %s" % (vp(M), vp(S), sp(sC['inv640'])))
    e("v_pk_fma_f32 %s, %s, %s, %s neg_lo:[1,0,0] neg_hi:[1,0,0]" % (vp(TT), vp(M), sp(sC['c640']), vp(S)))
    e("v_pk_fma_f32 %s, %s, %s, %s" % (vp(M), vp(TT), sp(sC['inv640']), vp(M)))
    for j in range(10):
        e("v_pk_add_f32 %s, %s, %s neg_lo:[0,1] neg_hi:[0,1]" % (vp(D), vp(P[j]), vp(M)))
        if j == 0:
            e("v_pk_mul_f32 %s, %s, %s" % (vp(S), vp(D), vp(D)))
        else:
            e("v_pk_fma_f32 %s, %s, %s, %s" % (vp(S), vp(D), vp(D), vp(S)))
    k.allreduce2(S, S + 1, TT, TT + 1)
    e("v_pk_mul_f32 %s, %s, %s" % (vp(V), vp(S), sp(sC['inv640'])))
    e("v_pk_fma_f32 %s, %s, %s, %s neg_lo:[1,0,0] neg_hi:[1,0,0]" % (vp(TT), vp(V), sp(sC['c640']), vp(S)))
    e("v_pk_fma_f32 %s, %s, %s, %s" % (vp(V), vp(TT), sp(sC['inv640']), vp(V)))

    def rnd(x):
        e("v_cvt_pk_bf16_f32 v%d, v%d, v%d" % (U, x, x + 1))
        e("v_lshlrev_b32 v%d, 16, v%d" % (x, U))
        e("v_and_b32 v%d, 0xffff0000, v%d" % (x + 1, U))
    rnd(M)
    rnd(V)
    e("v_pk_add_f32 %s, %s, %s" % (vp(V), vp(V), sp(sC['eps'])))
    rnd(V)
    e("v_sqrt_f32 v%d, v%d" % (V, V))
    e("v_sqrt_f32 v%d, v%d" % (V + 1, V + 1))
    k.nop(1)
    rnd(V)
    e("v_rcp_f32 v%d, v%d" % (R, V))
    e("v_rcp_f32 v%d, v%d" % (R + 1, V + 1))
    k.nop(1)
    for j in range(10):
        e("v_pk_add_f32 %s, %s, %s neg_lo:[0,1] neg_hi:[0,1]" % (vp(D), vp(P[j]), vp(M)))
        rnd(D)
        e("v_pk_mul_f32 %s, %s, %s" % (vp(Q), vp(D), vp(R)))
        e("v_pk_fma_f32 %s, %s, %s, %s neg_lo:[1,0,0] neg_hi:[1,0,0]" % (vp(D), vp(Q), vp(V), vp(D)))
        e("v_pk_fma_f32 %s, %s, %s, %s" % (vp(Q), vp(D), vp(R), vp(Q)))
        e("v_cvt_pk_bf16_f32 v%d, v%d, v%d" % (P[j], Q, Q + 1))


def ln_consts(k, base):
    sC = {'inv640': base, 'c640': base + 2, 'eps': base + 4}
    k.sconst2(sC['inv640'], 1.0 / 640.0)
    k.sconst2(sC['c640'], 640.0)
    k.sconst2(sC['eps'], 1e-5)
    return sC


K1_MAIN = 256
K1_HELP = 154


def gen_k1():
    k = K()
    kernel_header(k, "k1_kernel")
    k.rt_begin()
    e = k.e
    e("s_load_dwordx2 s[4:5], s[0:1], 0")
    e("s_load_dwordx4 s[8:11], s[0:1], 8")
    e("s_load_dwordx2 s[6:7], s[0:1], 80")
    e("v_lshrrev_b32 v2, 6, v0")
    e("v_and_b32 v1, 63, v0")
    e("s_nop 0")
    e("v_readfirstlane_b32 s3, v2")
    e("s_waitcnt lgkmcnt(0)")
    k.stamp(0)
    e("s_cmp_ge_u32 s2, %d" % K1_MAIN)
    e("s_cbranch_scc1 K1_helper")
    k.srd(12, 4, H_BYTES)
    k.srd(16, 6, X1_BYTES, WS_X1)
    k.srd_table(20, "tw640", 640 * 8)
    X = [10 + 2 * i for i in range(10)]
    T = [30 + 2 * i for i in range(10)]
    TW1 = [50 + 2 * i for i in range(9)]
    TW2 = [68 + 2 * i for i in range(7)]
    TMP = [82 + 2 * i for i in range(8)]
    e("v_lshrrev_b32 v3, 3, v0")
    e("v_and_b32 v4, 7, v0")
    e("s_cmp_ge_u32 s3, 4")
    e("s_cbranch_scc1 K1_ld_skip")
    e("s_lshl_b32 s37, s2, 3")
    e("s_lshl_b32 s38, s3, 1")
    e("s_add_u32 s37, s37, s38")
    e("s_mul_i32 s37, s37, 1280")
    e("v_lshlrev_b32 v5, 1, v1")
    for j in range(10):
        e("buffer_load_ushort v%d, v5, s[12:15], s37 offen offset:%d" % (X[j], j * 128))
        e("buffer_load_ushort v%d, v5, s[12:15], s37 offen offset:%d" % (X[j] + 1, 1280 + j * 128))
    e("v_lshlrev_b32 v5, 3, v1")
    for q1 in range(1, 10):
        e("v_mul_u32_u24 v6, %d, v5" % q1)
        e("buffer_load_dwordx2 %s, v6, s[20:23], 0 offen" % vp(TW1[q1 - 1]))
    k.label("K1_ld_skip")
    e("v_mul_u32_u24 v5, 80, v4")
    for q2 in range(1, 8):
        e("v_mul_u32_u24 v6, %d, v5" % q2)
        e("buffer_load_dwordx2 %s, v6, s[20:23], 0 offen" % vp(TW2[q2 - 1]))
    k.sconst2(24, R2)
    C5 = k.consts5(26)
    sC = ln_consts(k, 40)
    e("s_cmp_ge_u32 s3, 4")
    e("s_cbranch_scc1 K1_s1_done")
    e("s_waitcnt vmcnt(16)")
    k.stamp(1)
    for j in range(10):
        e("v_lshlrev_b32 v%d, 16, v%d" % (X[j], X[j]))
        e("v_lshlrev_b32 v%d, 16, v%d" % (X[j] + 1, X[j] + 1))
    layernorm_pk(k, X, TMP, sC)
    for j in range(10):
        e("v_and_b32 v%d, 0xffff0000, v%d" % (X[j] + 1, X[j]))
        e("v_lshlrev_b32 v%d, 16, v%d" % (X[j], X[j]))
    R = k.fft10(X, T, C5, False)
    e("s_waitcnt vmcnt(7)")
    k.stamp(2)
    e("s_mul_i32 s38, s3, %d" % (10 * P1))
    e("v_lshlrev_b32 v5, 3, v1")
    e("v_add_u32 v5, s38, v5")
    for q1 in range(10):
        if q1:
            k.cmul(R[q1], R[q1], TW1[q1 - 1], X[0])
        e("ds_write_b64 v5, %s offset:%d" % (vp(R[q1]), q1 * P1))
    k.label("K1_s1_done")
    e("s_waitcnt vmcnt(0) lgkmcnt(0)")
    e("s_barrier")
    k.stamp(3)
    X8 = X[:8]
    T8 = T[:8]
    e("v_mul_u32_u24 v5, %d, v3" % P1)
    e("v_lshl_add_u32 v5, v4, 3, v5")
    for j in range(8):
        e("ds_read_b64 %s, v5 offset:%d" % (vp(X8[j]), j * 64))
    e("s_waitcnt lgkmcnt(0)")
    k.fft8(X8, T8, 24, False)
    for q2 in range(8):
        if q2:
            k.cmul(T8[q2], T8[q2], TW2[q2 - 1], X8[0])
        e("ds_write_b64 v5, %s offset:%d" % (vp(T8[q2]), A2BASE + q2 * 64))
    e("s_waitcnt lgkmcnt(0)")
    e("s_barrier")
    k.stamp(4)
    e("v_mul_u32_u24 v5, %d, v3" % P1)
    e("v_lshl_add_u32 v5, v4, 6, v5")
    for j in range(4):
        e("ds_read_b128 %s, v5 offset:%d" % (vq(X8[2 * j]), A2BASE + j * 16))
    e("v_mul_u32_u24 v6, 205, v3")
    e("v_lshrrev_b32 v6, 11, v6")
    e("v_mul_u32_u24 v7, 10, v6")
    e("v_sub_u32 v7, v3, v7")
    e("v_mul_u32_u24 v8, 10, v4")
    e("v_add_u32 v7, v7, v8")
    e("v_lshlrev_b32 v7, 3, v7")
    e("v_mul_u32_u24 v6, %d, v6" % P3)
    e("v_add_u32 v7, v7, v6")
    e("s_waitcnt lgkmcnt(0)")
    k.fft8(X8, T8, 24, False)
    for q3 in range(8):
        e("ds_write_b64 v7, %s offset:%d" % (vp(T8[q3]), q3 * 640))
    e("v_and_b32 v8, 3, v0")
    e("v_lshrrev_b32 v9, 2, v0")
    e("v_mul_u32_u24 v5, %d, v8" % P3)
    e("v_sub_u32 v6, 400, v9")
    e("v_lshl_add_u32 v6, v6, 3, v5")
    e("v_lshl_add_u32 v5, v9, 3, v5")
    e("v_cmp_gt_u32 vcc, 4, v0")
    e("v_add_u32 v3, %d, v6" % (3 * 640))
    e("v_subrev_u32 v4, %d, v3" % (320 * 8))
    e("v_lshlrev_b32 v7, 14, v9")
    e("v_cndmask_b32 v3, v3, v4, vcc")
    e("v_lshl_add_u32 v7, v8, 4, v7")
    e("s_lshl_b32 s37, s2, 6")
    e("s_waitcnt lgkmcnt(0)")
    e("s_barrier")
    k.stamp(5)
    for i in range(4):
        e("ds_read_b64 %s, v5 offset:%d" % (vp(X[2 * i]), i * 640))
        if i == 0:
            e("ds_read_b64 %s, v3" % vp(X[1]))
        else:
            e("ds_read_b64 %s, v6 offset:%d" % (vp(X[2 * i + 1]), (3 - i) * 640))
    e("s_waitcnt lgkmcnt(0)")
    for i in range(4):
        z, y = X[2 * i], X[2 * i + 1]
        o = T[2 * i]
        e("v_pk_add_f32 %s, %s, %s neg_hi:[0,1]" % (vp(o), vp(z), vp(y)))
        e("v_pk_add_f32 %s, %s, %s op_sel:[1,1] op_sel_hi:[0,0] neg_hi:[1,0]" % (vp(o + 2), vp(z), vp(y)))
    e("s_cmp_lg_u32 s3, 0")
    e("s_cbranch_scc1 K1_st")
    z, y = X[0], X[1]
    o = T[0]
    s_ = TMP[0]
    e("v_pk_add_f32 %s, %s, %s" % (vp(s_), vp(z), vp(z)))
    e("v_cndmask_b32 v%d, v%d, v%d, vcc" % (o, o, s_))
    e("v_cndmask_b32 v%d, v%d, 0, vcc" % (o + 1, o + 1))
    e("v_cndmask_b32 v%d, v%d, v%d, vcc" % (o + 2, o + 2, s_ + 1))
    e("v_cndmask_b32 v%d, v%d, 0, vcc" % (o + 3, o + 3))
    q = 50
    e("v_add_f32 v%d, v%d, v%d" % (q, y, y))
    e("v_mov_b32 v%d, 0" % (q + 1))
    e("v_add_f32 v%d, v%d, v%d" % (q + 2, y + 1, y + 1))
    e("v_mov_b32 v%d, 0" % (q + 3))
    e("s_add_u32 s38, s37, 0x%x" % (320 * 16384))
    e("s_and_saveexec_b64 s[46:47], vcc")
    e("buffer_store_dwordx4 %s, v7, s[16:19], s38 offen" % vq(q))
    e("s_mov_b64 exec, s[46:47]")
    k.label("K1_st")
    for i in range(4):
        e("buffer_store_dwordx4 %s, v7, s[16:19], s37 offen" % vq(T[2 * i]))
        if i < 3:
            e("s_add_u32 s37, s37, 0x%x" % (80 * 16384))
    k.stamp_flush(6)
    k.label("K1_end")
    k.rt_end(0)
    e("s_endpgm")
    k.label("K1_helper")
    e("s_sub_u32 s4, s2, %d" % K1_MAIN)
    e("s_mul_i32 s4, s4, 5")
    e("s_add_u32 s4, s4, s3")
    e("s_cmp_ge_u32 s4, 768")
    e("s_cbranch_scc1 K1_end")
    k.srd(12, 8, 2048 * 321 * 2)
    k.srd(16, 10, 2048 * 321 * 2)
    k.srd(20, 6, WT_BYTES, WS_WT)
    e("s_and_b32 s5, s4, 127")
    e("s_lshr_b32 s24, s4, 7")
    e("s_lshr_b32 s25, s5, 4")
    e("s_lshr_b32 s26, s5, 1")
    e("s_and_b32 s26, s26, 7")
    e("s_lshl_b32 s26, s26, 3")
    e("s_add_u32 s25, s25, s26")
    e("s_and_b32 s26, s5, 1")
    e("s_lshl_b32 s26, s26, 8")
    e("s_add_u32 s25, s25, s26")
    e("s_mul_i32 s25, s25, 642")
    e("s_lshl_b32 s27, s24, 6")
    e("v_add_u32 v2, s27, v1")
    e("v_lshlrev_b32 v3, 1, v2")
    e("v_lshlrev_b32 v4, 13, v2")
    e("s_lshl_b32 s28, s5, 6")
    e("v_cmp_gt_u32 vcc, 321, v2")
    e("s_and_saveexec_b64 s[40:41], vcc")
    e("s_cbranch_execz K1_end")
    for q3 in range(4):
        for q4 in range(4):
            i = q3 * 4 + q4
            e("s_add_u32 s29, s25, %d" % ((64 * q3 + 512 * q4) * 642))
            e("buffer_load_ushort v%d, v3, s[12:15], s29 offen" % (10 + i))
            e("buffer_load_ushort v%d, v3, s[16:19], s29 offen" % (26 + i))
    e("s_waitcnt vmcnt(0)")
    for i in range(16):
        e("v_lshl_or_b32 v%d, v%d, 16, v%d" % (10 + i, 26 + i, 10 + i))
    for i in range(4):
        e("buffer_store_dwordx4 %s, v4, s[20:23], s28 offen offset:%d" % (vq(10 + 4 * i), i * 16))
    k.rt_end(0)
    e("s_endpgm")
    return k, 100


K2_MAIN = 321
K2_HELP = 240
E1B = 0
E2B = 16384
E3B = E2B + 64 * 288
K2_LDS = E3B + 64 * 288


def wprep_variant(k, which):
    e = k.e
    if which == 1:
        pitch, per, srcofs, dst = 3072, 10, 32, WS_W1F
    else:
        pitch, per, srcofs, dst = 1280, 12, 48, WS_W2F
    e("s_load_dwordx2 s[8:9], s[0:1], %d" % srcofs)
    magic = (1 << 20) // per + 1
    e("s_mul_i32 s5, s4, %d" % magic)
    e("s_lshr_b32 s5, s5, 20")
    e("s_mul_i32 s24, s5, %d" % per)
    e("s_sub_u32 s24, s4, s24")
    e("s_waitcnt lgkmcnt(0)")
    k.srd(12, 8, WF_BYTES)
    k.srd(16, 6, WF_BYTES, dst)
    e("v_lshlrev_b32 v4, 4, v1")
    if which == 1:
        e("v_lshrrev_b32 v2, 5, v1")
        e("v_and_b32 v3, 31, v1")
        e("v_mul_u32_u24 v2, %d, v2" % (8 * pitch))
        e("v_lshl_add_u32 v2, v3, 1, v2")
        e("s_lshl_b32 s25, s5, 6")
        e("s_mul_i32 s26, s24, %d" % (64 * pitch))
        e("s_add_u32 s25, s25, s26")
        e("s_mul_i32 s27, s5, %d" % (40 * 1024))
        e("s_lshl_b32 s26, s24, 12")
        e("s_add_u32 s27, s27, s26")
        kper, dstep = 16, 1024
        joff = lambda j: j
    else:
        e("v_lshrrev_b32 v2, 5, v1")
        e("v_lshrrev_b32 v3, 4, v1")
        e("v_and_b32 v3, 1, v3")
        e("v_lshl_add_u32 v2, v2, 2, v3")
        e("v_mul_u32_u24 v2, %d, v2" % (4 * pitch))
        e("v_and_b32 v3, 15, v1")
        e("v_lshl_add_u32 v2, v3, 1, v2")
        e("s_lshl_b32 s25, s5, 5")
        e("s_mul_i32 s26, s24, %d" % (128 * pitch))
        e("s_add_u32 s25, s25, s26")
        e("s_mul_i32 s26, s5, 52429")
        e("s_lshr_b32 s26, s26, 18")
        e("s_mul_i32 s27, s26, 5")
        e("s_sub_u32 s27, s5, s27")
        e("s_mul_i32 s26, s26, 240")
        e("s_add_u32 s27, s27, s26")
        e("s_mul_i32 s26, s24, 20")
        e("s_add_u32 s27, s27, s26")
        e("s_lshl_b32 s27, s27, 10")
        kper, dstep = 32, 5120
        joff = lambda j: 8 * (j >> 2) + (j & 3)
    for sl in range(4):
        for j in range(8):
            e("s_add_u32 s28, s25, %d" % ((kper * sl + joff(j)) * pitch))
            e("buffer_load_ushort v%d, v2, s[12:15], s28 offen" % (10 + sl * 8 + j))
    e("s_waitcnt vmcnt(0)")
    for sl in range(4):
        for jj in range(4):
            e("v_lshl_or_b32 v%d, v%d, 16, v%d" % (50 + sl * 4 + jj, 10 + sl * 8 + 2 * jj + 1, 10 + sl * 8 + 2 * jj))
    for sl in range(4):
        e("buffer_store_dwordx4 %s, v4, s[16:19], s27 offen" % vq(50 + sl * 4))
        if sl < 3:
            e("s_add_u32 s27, s27, %d" % dstep)
    k.rt_end(1)
    e("s_endpgm")


def gen_k2():
    k = K()
    kernel_header(k, "k2_kernel")
    k.rt_begin()
    e = k.e
    e("s_load_dwordx2 s[6:7], s[0:1], 80")
    e("v_lshrrev_b32 v2, 6, v0")
    e("v_and_b32 v1, 63, v0")
    e("s_nop 0")
    e("v_readfirstlane_b32 s3, v2")
    e("s_waitcnt lgkmcnt(0)")
    k.stamp(0)
    e("s_cmp_ge_u32 s2, %d" % K2_MAIN)
    e("s_cbranch_scc1 K2_helper")
    k.srd(12, 6, X1_BYTES, WS_X1)
    k.srd(16, 6, WT_BYTES, WS_WT)
    k.srd_table(20, "tw2048", 2048 * 8)
    X = [10 + 2 * i for i in range(8)]
    T = [26 + 2 * i for i in range(8)]
    TW1 = [42 + 2 * i for i in range(7)]
    TW2 = [56 + 2 * i for i in range(7)]
    TW3 = [70 + 2 * i for i in range(7)]
    WV = 84
    e("s_lshl_b32 s28, s2, 14")
    e("v_lshlrev_b32 v5, 3, v0")
    for j in range(8):
        k.vm("buffer_load_dwordx2 %s, v5, s[12:15], s28 offen offset:%d" % (vp(X[j]), (j * 2048) % 4096), "x")
        if j % 2 == 1 and j < 7:
            e("s_add_u32 s28, s28, 4096")
    for q in range(1, 8):
        e("v_mul_u32_u24 v6, %d, v5" % q)
        k.vm("buffer_load_dwordx2 %s, v6, s[20:23], 0 offen" % vp(TW1[q - 1]), "tw1")
    e("v_and_b32 v3, 31, v0")
    e("v_lshlrev_b32 v7, 6, v3")
    for q in range(1, 8):
        e("v_mul_u32_u24 v6, %d, v7" % q)
        k.vm("buffer_load_dwordx2 %s, v6, s[20:23], 0 offen" % vp(TW2[q - 1]), "tw2")
    e("v_and_b32 v4, 3, v0")
    e("v_lshlrev_b32 v7, 9, v4")
    for q in range(1, 8):
        e("v_mul_u32_u24 v6, %d, v7" % q)
        k.vm("buffer_load_dwordx2 %s, v6, s[20:23], 0 offen" % vp(TW3[q - 1]), "tw3")
    e("s_lshl_b32 s29, s2, 13")
    e("v_lshlrev_b32 v6, 5, v0")
    k.vm("buffer_load_dwordx4 %s, v6, s[16:19], s29 offen" % vq(WV), "w")
    k.vm("buffer_load_dwordx4 %s, v6, s[16:19], s29 offen offset:16" % vq(WV + 4), "w")
    k.sconst2(24, R2)
    k.sconst2(26, 1.0 / (2.0 * 2048 * 640))
    e("v_lshrrev_b32 v6, 5, v0")
    e("v_lshlrev_b32 v6, 11, v6")
    e("v_lshl_add_u32 v6, v3, 3, v6")
    e("v_lshrrev_b32 v7, 5, v0")
    e("v_mul_u32_u24 v7, 2304, v7")
    e("v_lshl_add_u32 v7, v3, 3, v7")
    e("v_lshrrev_b32 v8, 2, v0")
    e("v_mul_u32_u24 v8, 288, v8")
    e("v_lshl_add_u32 v9, v4, 6, v8")
    e("v_lshl_add_u32 v8, v4, 3, v8")
    k.vmwait("x")
    k.stamp(1)
    k.fft8(X, T, 24, False)
    k.vmwait("tw1")
    k.stamp(2)
    for q in range(8):
        if q:
            k.cmul(T[q], T[q], TW1[q - 1], X[0])
        e("ds_write_b64 v5, %s offset:%d" % (vp(T[q]), E1B + q * 2048))
    e("s_waitcnt lgkmcnt(0)")
    e("s_barrier")
    k.stamp(3)
    for j in range(8):
        e("ds_read_b64 %s, v6 offset:%d" % (vp(X[j]), E1B + j * 256))
    e("s_waitcnt lgkmcnt(0)")
    k.fft8(X, T, 24, False)
    k.vmwait("tw2")
    for q in range(8):
        if q:
            k.cmul(T[q], T[q], TW2[q - 1], X[0])
        e("ds_write_b64 v7, %s offset:%d" % (vp(T[q]), E2B + q * 288))
    e("s_waitcnt lgkmcnt(0)")
    e("s_barrier")
    k.stamp(4)
    for j in range(8):
        e("ds_read_b64 %s, v8 offset:%d" % (vp(X[j]), E2B + j * 32))
    e("s_waitcnt lgkmcnt(0)")
    k.fft8(X, T, 24, False)
    k.vmwait("tw3")
    for q in range(8):
        if q:
            k.cmul(T[q], T[q], TW3[q - 1], X[0])
        e("ds_write_b64 v8, %s offset:%d" % (vp(T[q]), E3B + q * 32))
    k.vmwait("w")
    WS_ = [92 + 2 * i for i in range(8)]
    for i in range(8):
        w = WS_[i]
        e("v_lshlrev_b32 v%d, 16, v%d" % (w, WV + i))
        e("v_and_b32 v%d, 0xffff0000, v%d" % (w + 1, WV + i))
        k.cmul_s(w, w, 26)
    e("s_waitcnt lgkmcnt(0)")
    e("s_barrier")
    k.stamp(5)
    for j in range(4):
        e("ds_read_b128 %s, v9 offset:%d" % (vq(X[2 * j]), E3B + j * 16))
    e("s_waitcnt lgkmcnt(0)")
    k.fft4(X[0:4], T[0:4], False)
    k.fft4(X[4:8], T[4:8], False)
    for i in range(8):
        k.cmul(X[i], X[i], WS_[i], T[i % 4])
    k.fft4(X[0:4], T[0:4], True)
    k.fft4(X[4:8], T[4:8], True)
    for j in range(4):
        e("ds_write_b128 v9, %s offset:%d" % (vq(X[2 * j]), E3B + j * 16))
    e("s_waitcnt lgkmcnt(0)")
    e("s_barrier")
    k.stamp(6)
    for q in range(8):
        e("ds_read_b64 %s, v8 offset:%d" % (vp(X[q]), E3B + q * 32))
    e("s_waitcnt lgkmcnt(0)")
    for q in range(1, 8):
        k.cmul(X[q], X[q], TW3[q - 1], T[q], conj=True)
    k.fft8(X, T, 24, True)
    for j in range(8):
        e("ds_write_b64 v8, %s offset:%d" % (vp(T[j]), E2B + j * 32))
    e("s_waitcnt lgkmcnt(0)")
    e("s_barrier")
    k.stamp(7)
    for q in range(8):
        e("ds_read_b64 %s, v7 offset:%d" % (vp(X[q]), E2B + q * 288))
    e("s_waitcnt lgkmcnt(0)")
    for q in range(1, 8):
        k.cmul(X[q], X[q], TW2[q - 1], T[q], conj=True)
    k.fft8(X, T, 24, True)
    for j in range(8):
        e("ds_write_b64 v6, %s offset:%d" % (vp(T[j]), E1B + j * 256))
    e("s_waitcnt lgkmcnt(0)")
    e("s_barrier")
    k.stamp(8)
    for q in range(8):
        e("ds_read_b64 %s, v5 offset:%d" % (vp(X[q]), E1B + q * 2048))
    e("s_waitcnt lgkmcnt(0)")
    for q in range(1, 8):
        k.cmul(X[q], X[q], TW1[q - 1], T[q], conj=True)
    k.fft8(X, T, 24, True)
    e("s_lshl_b32 s28, s2, 14")
    for j in range(8):
        e("buffer_store_dwordx2 %s, v5, s[12:15], s28 offen offset:%d" % (vp(T[j]), (j * 2048) % 4096))
        if j % 2 == 1 and j < 7:
            e("s_add_u32 s28, s28, 4096")
    k.stamp_flush(9)
    k.label("K2_end")
    k.rt_end(1)
    e("s_endpgm")
    k.label("K2_helper")
    e("s_sub_u32 s4, s2, %d" % K2_MAIN)
    e("s_lshl_b32 s4, s4, 2")
    e("s_add_u32 s4, s4, s3")
    e("s_cmp_ge_u32 s4, 960")
    e("s_cbranch_scc1 K2_end")
    e("s_cmp_ge_u32 s4, 480")
    e("s_cbranch_scc1 K2_helper2")
    wprep_variant(k, 1)
    k.label("K2_helper2")
    e("s_sub_u32 s4, s4, 480")
    wprep_variant(k, 2)
    return k, 108


def gen_k3():
    k = K()
    kernel_header(k, "k3_kernel")
    k.rt_begin()
    e = k.e
    e("s_load_dwordx2 s[4:5], s[0:1], 0")
    e("s_load_dwordx2 s[6:7], s[0:1], 80")
    e("v_lshrrev_b32 v2, 6, v0")
    e("v_and_b32 v1, 63, v0")
    e("s_nop 0")
    e("v_readfirstlane_b32 s3, v2")
    e("s_waitcnt lgkmcnt(0)")
    k.stamp(0)
    e("s_cmp_ge_u32 s2, 256")
    e("s_cbranch_scc1 K3_end")
    k.srd(12, 4, H_BYTES)
    k.srd(16, 6, X1_BYTES, WS_X1)
    k.srd_table(20, "tw640", 640 * 8)
    X = [10 + 2 * i for i in range(10)]
    T = [30 + 2 * i for i in range(10)]
    TW1 = [50 + 2 * i for i in range(9)]
    TW2 = [68 + 2 * i for i in range(7)]
    TMP = [82 + 2 * i for i in range(8)]
    XR = [100 + 2 * i for i in range(10)]
    E320 = 120
    e("v_lshrrev_b32 v3, 3, v0")
    e("v_and_b32 v4, 7, v0")
    e("s_lshl_b32 s37, s2, 6")
    e("v_and_b32 v8, 3, v0")
    e("v_lshrrev_b32 v9, 2, v0")
    e("v_lshlrev_b32 v7, 14, v9")
    e("v_lshl_add_u32 v7, v8, 4, v7")
    e("s_mov_b32 s38, s37")
    for i in range(4):
        e("buffer_load_dwordx4 %s, v7, s[16:19], s38 offen" % vq(X[2 * i]))
        e("s_add_u32 s38, s38, 0x%x" % (80 * 16384))
    e("v_cmp_gt_u32 vcc, 4, v0")
    e("s_cmp_lg_u32 s3, 0")
    e("s_cbranch_scc1 K3_no320")
    e("s_and_saveexec_b64 s[34:35], vcc")
    e("buffer_load_dwordx4 %s, v7, s[16:19], s38 offen" % vq(E320))
    e("s_mov_b64 exec, s[34:35]")
    k.label("K3_no320")
    e("v_mul_u32_u24 v5, 80, v4")
    for n1 in range(1, 8):
        e("v_mul_u32_u24 v6, %d, v5" % n1)
        e("buffer_load_dwordx2 %s, v6, s[20:23], 0 offen" % vp(TW2[n1 - 1]))
    e("s_cmp_ge_u32 s3, 4")
    e("s_cbranch_scc1 K3_pre_done")
    e("s_lshl_b32 s38, s2, 3")
    e("s_lshl_b32 s39, s3, 1")
    e("s_add_u32 s39, s38, s39")
    e("s_mul_i32 s38, s39, 1280")
    e("v_lshlrev_b32 v5, 1, v1")
    for j in range(10):
        e("buffer_load_ushort v%d, v5, s[12:15], s38 offen offset:%d" % (XR[j], j * 128))
        e("buffer_load_ushort v%d, v5, s[12:15], s38 offen offset:%d" % (XR[j] + 1, 1280 + j * 128))
    e("v_lshlrev_b32 v5, 3, v1")
    for q1 in range(1, 10):
        e("v_mul_u32_u24 v6, %d, v5" % q1)
        e("buffer_load_dwordx2 %s, v6, s[20:23], 0 offen" % vp(TW1[q1 - 1]))
    k.label("K3_pre_done")
    k.srd(44, 6, H_BYTES, WS_H)
    k.srd(48, 6, H_BYTES, WS_LN2F)
    k.sconst2(24, R2)
    C5 = k.consts5(26)
    sC = ln_consts(k, 52)
    e("v_mul_u32_u24 v5, %d, v8" % P3)
    e("v_sub_u32 v6, 400, v9")
    e("v_lshl_add_u32 v6, v6, 3, v5")
    e("v_lshl_add_u32 v5, v9, 3, v5")
    e("v_add_u32 v7, %d, v6" % (3 * 640))
    e("v_cndmask_b32 v7, v7, v5, vcc")
    e("s_cmp_ge_u32 s3, 4")
    e("s_cbranch_scc1 K3_w4")
    e("s_waitcnt vmcnt(36)")
    e("s_branch K3_wj")
    k.label("K3_w4")
    e("s_waitcnt vmcnt(7)")
    k.label("K3_wj")
    k.stamp(1)
    for i in range(4):
        a_, b_ = X[2 * i], X[2 * i + 1]
        if i == 0:
            e("v_cndmask_b32 v%d, v%d, 0, vcc" % (a_ + 1, a_ + 1))
            e("v_cndmask_b32 v%d, v%d, 0, vcc" % (b_ + 1, b_ + 1))
        e("v_pk_add_f32 %s, %s, %s op_sel:[0,1] op_sel_hi:[1,0] neg_lo:[0,1]" % (vp(T[2 * i]), vp(a_), vp(b_)))
        e("v_pk_add_f32 %s, %s, %s op_sel:[0,1] op_sel_hi:[1,0] neg_hi:[1,0]" % (vp(T[2 * i + 1]), vp(a_), vp(b_)))
        if i == 0:
            e("ds_write_b64 v7, %s" % vp(T[1]))
        else:
            e("ds_write_b64 v6, %s offset:%d" % (vp(T[2 * i + 1]), (3 - i) * 640))
        e("ds_write_b64 v5, %s offset:%d" % (vp(T[2 * i]), i * 640))
    e("s_cmp_lg_u32 s3, 0")
    e("s_cbranch_scc1 K3_no320b")
    e("s_and_saveexec_b64 s[34:35], vcc")
    e("v_mov_b32 v%d, v%d" % (E320 + 1, E320 + 2))
    e("ds_write_b64 v5, %s offset:%d" % (vp(E320), 320 * 8))
    e("s_mov_b64 exec, s[34:35]")
    k.label("K3_no320b")
    X8 = X[:8]
    T8 = T[:8]
    e("v_mul_u32_u24 v6, 205, v3")
    e("v_lshrrev_b32 v6, 11, v6")
    e("v_mul_u32_u24 v7, 10, v6")
    e("v_sub_u32 v7, v3, v7")
    e("v_mul_u32_u24 v8, 10, v4")
    e("v_add_u32 v7, v7, v8")
    e("v_lshlrev_b32 v7, 3, v7")
    e("v_mul_u32_u24 v6, %d, v6" % P3)
    e("v_add_u32 v7, v7, v6")
    e("v_mul_u32_u24 v5, %d, v3" % P1)
    e("v_lshl_add_u32 v6, v4, 6, v5")
    e("v_lshl_add_u32 v5, v4, 3, v5")
    e("s_waitcnt lgkmcnt(0)")
    e("s_barrier")
    k.stamp(2)
    for q3 in range(8):
        e("ds_read_b64 %s, v7 offset:%d" % (vp(X8[q3]), q3 * 640))
    e("s_waitcnt lgkmcnt(0)")
    k.fft8(X8, T8, 24, True)
    e("s_cmp_ge_u32 s3, 4")
    e("s_cbranch_scc1 K3_w4b")
    e("s_waitcnt vmcnt(29)")
    e("s_branch K3_wjb")
    k.label("K3_w4b")
    e("s_waitcnt vmcnt(0)")
    k.label("K3_wjb")
    for n1 in range(1, 8):
        k.cmul(T8[n1], T8[n1], TW2[n1 - 1], X8[n1], conj=True)
    for j in range(4):
        e("ds_write_b128 v6, %s offset:%d" % (vq(T8[2 * j]), A2BASE + j * 16))
    e("s_waitcnt lgkmcnt(0)")
    e("s_barrier")
    k.stamp(3)
    for q2 in range(8):
        e("ds_read_b64 %s, v5 offset:%d" % (vp(X8[q2]), A2BASE + q2 * 64))
    e("s_waitcnt lgkmcnt(0)")
    k.fft8(X8, T8, 24, True)
    for j in range(8):
        e("ds_write_b64 v5, %s offset:%d" % (vp(T8[j]), j * 64))
    e("s_waitcnt lgkmcnt(0)")
    e("s_barrier")
    k.stamp(4)
    e("s_cmp_ge_u32 s3, 4")
    e("s_cbranch_scc1 K3_end")
    e("s_mul_i32 s40, s3, %d" % (10 * P1))
    e("v_lshlrev_b32 v5, 3, v1")
    e("v_add_u32 v5, s40, v5")
    for q1 in range(10):
        e("ds_read_b64 %s, v5 offset:%d" % (vp(X[q1]), q1 * P1))
    e("s_waitcnt vmcnt(0) lgkmcnt(0)")
    for q1 in range(1, 10):
        k.cmul(X[q1], X[q1], TW1[q1 - 1], T[q1], conj=True)
    R = k.fft10(X, T, C5, True)
    U = TMP[7]
    e("v_lshlrev_b32 v5, 2, v1")
    e("s_lshr_b32 s40, s39, 1")
    e("s_mul_i32 s40, s40, 2560")
    for j in range(10):
        y = R[j]
        h = XR[j]
        e("v_cvt_pk_bf16_f32 v%d, v%d, v%d" % (U, y, y + 1))
        e("v_lshlrev_b32 v%d, 16, v%d" % (h, h))
        e("v_lshlrev_b32 v%d, 16, v%d" % (h + 1, h + 1))
        e("v_lshlrev_b32 v%d, 16, v%d" % (y, U))
        e("v_and_b32 v%d, 0xffff0000, v%d" % (y + 1, U))
        e("v_pk_add_f32 %s, %s, %s" % (vp(h), vp(h), vp(y)))
        e("v_cvt_pk_bf16_f32 v%d, v%d, v%d" % (y, h, h + 1))
        e("v_lshlrev_b32 v%d, 16, v%d" % (h, y))
        e("v_and_b32 v%d, 0xffff0000, v%d" % (h + 1, y))
        e("buffer_store_dword v%d, v5, s[44:47], s40 offen offset:%d" % (y, j * 256))
    layernorm_pk(k, XR, TMP, sC)
    e("v_lshrrev_b32 v6, 4, v1")
    e("v_lshlrev_b32 v6, 10, v6")
    e("v_lshrrev_b32 v7, 3, v1")
    e("v_and_b32 v7, 1, v7")
    e("v_lshl_add_u32 v6, v7, 9, v6")
    e("v_and_b32 v7, 7, v1")
    e("v_lshl_add_u32 v6, v7, 1, v6")
    e("s_lshr_b32 s40, s39, 5")
    e("s_mul_i32 s40, s40, 40960")
    e("s_and_b32 s41, s39, 31")
    e("s_lshl_b32 s41, s41, 4")
    e("s_add_u32 s40, s40, s41")
    for j in range(10):
        o = XR[j]
        e("buffer_store_short v%d, v6, s[48:51], s40 offen" % o)
        e("buffer_store_short_d16_hi v%d, v6, s[48:51], s40 offen offset:16" % o)
        if j < 9:
            e("s_add_u32 s40, s40, 4096")
    k.stamp_flush(5)
    k.label("K3_end")
    k.rt_end(2)
    e("s_endpgm")
    return k, 136


K4_LDS = 3 * 40960


def epi_pair_relu2(k, a0, a1, bias, t0, t1, p, dst):
    e = k.e
    e("v_cvt_pk_bf16_f32 v%d, v%d, v%d" % (p, a0, a1))
    e("v_lshlrev_b32 v%d, 16, v%d" % (a0, p))
    e("v_and_b32 v%d, 0xffff0000, v%d" % (a1, p))
    e("v_lshlrev_b32 v%d, 16, v%d" % (t0, bias))
    e("v_and_b32 v%d, 0xffff0000, v%d" % (t1, bias))
    e("v_pk_add_f32 %s, %s, %s" % (vp(a0), vp(a0), vp(t0)))
    e("v_cvt_pk_bf16_f32 v%d, v%d, v%d" % (p, a0, a1))
    e("v_lshlrev_b32 v%d, 16, v%d" % (a0, p))
    e("v_and_b32 v%d, 0xffff0000, v%d" % (a1, p))
    e("v_max_f32 v%d, 0, v%d" % (a0, a0))
    e("v_max_f32 v%d, 0, v%d" % (a1, a1))
    e("v_pk_mul_f32 %s, %s, %s" % (vp(a0), vp(a0), vp(a0)))
    e("v_cvt_pk_bf16_f32 v%d, v%d, v%d" % (dst, a0, a1))


def gen_k4():
    k = K()
    kernel_header(k, "k4_kernel")
    k.rt_begin()
    e = k.e
    e("s_load_dwordx2 s[4:5], s[0:1], 40")
    e("s_load_dwordx2 s[6:7], s[0:1], 80")
    e("v_lshrrev_b32 v2, 6, v0")
    e("v_and_b32 v1, 63, v0")
    e("s_nop 0")
    e("v_readfirstlane_b32 s3, v2")
    e("s_waitcnt lgkmcnt(0)")
    k.stamp(0)
    e("s_cmp_ge_u32 s2, 256")
    e("s_cbranch_scc1 K4_end")
    k.srd(12, 6, H_BYTES, WS_LN2F)
    k.srd(16, 6, WF_BYTES, WS_W1F)
    e("s_and_b32 s8, s2, 3")
    e("s_lshl_b32 s8, s8, 2")
    e("s_lshr_b32 s9, s2, 3")
    e("s_and_b32 s10, s9, 3")
    e("s_add_u32 s8, s8, s10")
    e("s_lshr_b32 s9, s9, 2")
    e("s_lshr_b32 s10, s2, 2")
    e("s_and_b32 s10, s10, 1")
    e("s_lshl_b32 s10, s10, 3")
    e("s_add_u32 s9, s9, s10")
    e("s_lshl_b32 s8, s8, 2")
    e("s_add_u32 s8, s8, s3")
    e("s_mul_i32 s10, s8, 40960")
    e("s_mul_i32 s11, s9, %d" % (3 * 40960))
    e("s_lshl_b32 s28, s3, 11")
    e("v_lshlrev_b32 v2, 4, v1")
    ACC = 16
    BF = 64
    AB = [224, 236]

    def chunk_ops(c):
        ops = []
        for i in range(3):
            def f(i=i):
                e("s_add_u32 s29, s28, %d" % (i * 40960 + c * 8192))
                e("s_add_u32 s30, s29, s11")
                e("s_mov_b32 m0, s29")
                e("s_nop 0")
                k.vm("buffer_load_dwordx4 v2, s[16:19], s30 offen lds", "c%d" % c)
            ops.append(f)
            ops.append(lambda: k.vm("buffer_load_dwordx4 v2, s[16:19], s30 offen offset:1024 lds", "c%d" % c))
        for s in range(8):
            def g(s=s):
                if s % 4 == 0:
                    e("s_add_u32 s31, s10, %d" % ((8 * c + s) * 1024))
                k.vm("buffer_load_dwordx4 %s, v2, s[12:15], s31 offen offset:%d" % (vq(BF + (8 * c + s) * 4), (s % 4) * 1024), "c%d" % c)
            ops.append(g)
        return ops

    def bias_ops():
        ops = []
        def h0():
            e("v_lshrrev_b32 v5, 5, v1")
            e("v_lshlrev_b32 v5, 3, v5")
            e("s_mul_i32 s32, s9, 192")
        for i in range(3):
            for g in range(4):
                def f(i=i, g=g):
                    if i == 0 and g == 0:
                        h0()
                    k.vm("buffer_load_dwordx2 %s, v5, s[24:27], s32 offen offset:%d" % (vp(BF + (i * 4 + g) * 2), i * 64 + g * 16), "bias")
                ops.append(f)
        return ops

    def areads(slab, buf):
        for i in range(3):
            e("ds_read_b128 %s, v%d offset:%d" % (vq(AB[buf] + 4 * i), 2 + i, slab * 1024))

    for c in range(2):
        for op in chunk_ops(c):
            op()
    k.srd(20, 6, HF_BYTES, WS_HF)
    k.srd(24, 4, 3072)
    e("v_add_u32 v3, 40960, v2")
    e("v_add_u32 v4, 81920, v2")
    for i in range(48):
        e("v_mov_b32 v%d, 0" % (ACC + i))
    for c in range(5):
        k.vmwait("c%d" % c)
        e("s_barrier")
        if c in (0, 1, 2, 4):
            k.stamp(1 + (0, 1, 2, 0, 3)[c])
        pend = chunk_ops(c + 2) if c + 2 < 5 else (bias_ops() if c == 3 else [])
        areads(8 * c, 0)
        for s in range(8):
            slab = 8 * c + s
            buf = s % 2
            if s < 7:
                areads(slab + 1, 1 - buf)
                e("s_waitcnt lgkmcnt(3)")
            else:
                e("s_waitcnt lgkmcnt(0)")
            for i in range(3):
                e("v_mfma_f32_32x32x16_bf16 v[%d:%d], %s, %s, v[%d:%d]" % (
                    ACC + 16 * i, ACC + 16 * i + 15, vq(AB[buf] + 4 * i), vq(BF + slab * 4), ACC + 16 * i, ACC + 16 * i + 15))
                if i < 2 and pend:
                    pend.pop(0)()
        while pend:
            pend.pop(0)()
    e("v_lshrrev_b32 v9, 4, v1")
    e("v_and_b32 v9, 1, v9")
    e("v_mul_u32_u24 v9, 49152, v9")
    e("v_and_b32 v10, 15, v1")
    e("v_lshl_add_u32 v9, v10, 4, v9")
    e("v_lshrrev_b32 v10, 5, v1")
    e("v_lshl_add_u32 v9, v10, 8, v9")
    e("s_mul_i32 s32, s8, 96")
    e("s_mul_i32 s33, s9, 3")
    e("s_add_u32 s32, s32, s33")
    e("s_lshl_b32 s32, s32, 10")
    k.vmwait("bias")
    k.stamp(5)
    k.nop(16)
    PK = 100
    for i in range(3):
        for gp in range(2):
            for g in (2 * gp, 2 * gp + 1):
                for hp in range(2):
                    a = ACC + 16 * i + 4 * g + 2 * hp
                    epi_pair_relu2(k, a, a + 1, BF + (i * 4 + g) * 2 + hp, 6, 7, 8, PK + i * 8 + g * 2 + hp)
            e("buffer_store_dwordx4 %s, v9, s[20:23], s32 offen offset:%d sc1" % (vq(PK + i * 8 + gp * 4), i * 1024 + gp * 512))
    k.stamp_flush(6)
    k.label("K4_end")
    k.rt_end(3)
    e("s_endpgm")
    return k, 248


K5_SLOTS = 6
K5_PD = 4
K5_LDS = K5_SLOTS * 20480


def gen_k5():
    k = K()
    kernel_header(k, "k5_kernel")
    k.rt_begin()
    e = k.e
    e("s_load_dwordx4 s[4:7], s[0:1], 56")
    e("s_load_dwordx2 s[8:9], s[0:1], 80")
    e("v_lshrrev_b32 v2, 6, v0")
    e("v_and_b32 v1, 63, v0")
    e("s_nop 0")
    e("v_readfirstlane_b32 s3, v2")
    e("s_waitcnt lgkmcnt(0)")
    k.stamp(0)
    e("s_cmp_ge_u32 s2, 256")
    e("s_cbranch_scc1 K5_end")
    k.srd(12, 8, HF_BYTES, WS_HF)
    k.srd(16, 8, WF_BYTES, WS_W2F)
    k.srd(36, 8, H_BYTES, WS_H)
    e("s_and_b32 s8, s2, 3")
    e("s_lshl_b32 s8, s8, 3")
    e("s_lshr_b32 s9, s2, 3")
    e("s_and_b32 s10, s9, 7")
    e("s_add_u32 s8, s8, s10")
    e("s_lshr_b32 s9, s9, 3")
    e("s_lshr_b32 s10, s2, 2")
    e("s_and_b32 s10, s10, 1")
    e("s_lshl_b32 s10, s10, 2")
    e("s_add_u32 s9, s9, s10")
    e("s_lshl_b32 s8, s8, 2")
    e("s_add_u32 s8, s8, s3")
    e("s_mul_i32 s10, s8, %d" % (48 * 1024))
    e("s_mul_i32 s11, s9, %d" % (240 * 1024))
    e("s_mul_i32 s28, s3, 5120")
    e("v_lshlrev_b32 v2, 4, v1")
    ACC = 16
    AB = [36, 56]
    BF = 76
    EP = 176
    NCH = 12
    PD = K5_PD

    def chunk_ops(c):
        slot = c % K5_SLOTS
        ops = []
        def d0():
            e("s_add_u32 s29, s28, %d" % (slot * 20480))
            e("s_add_u32 s30, s28, %d" % (c * 20480))
            e("s_add_u32 s30, s30, s11")
            e("s_mov_b32 m0, s29")
            e("s_nop 0")
            k.vm("buffer_load_dwordx4 v2, s[16:19], s30 offen lds", "c%d" % c)
        ops.append(d0)
        for i in range(1, 4):
            ops.append(lambda i=i: k.vm("buffer_load_dwordx4 v2, s[16:19], s30 offen offset:%d lds" % (i * 1024), "c%d" % c))
        def d4():
            e("s_add_u32 s29, s29, 4096")
            e("s_add_u32 s30, s30, 4096")
            e("s_mov_b32 m0, s29")
            e("s_nop 0")
            k.vm("buffer_load_dwordx4 v2, s[16:19], s30 offen lds", "c%d" % c)
        ops.append(d4)
        for s_ in range(4):
            def g(s_=s_):
                if s_ == 0:
                    e("s_add_u32 s31, s10, %d" % (4 * c * 1024))
                k.vm("buffer_load_dwordx4 %s, v2, s[12:15], s31 offen offset:%d" % (vq(BF + slot * 16 + s_ * 4), s_ * 1024), "c%d" % c)
            ops.append(g)
        return ops

    def ep_ops():
        ops = []
        def pre():
            e("v_and_b32 v5, 15, v1")
            e("s_lshl_b32 s32, s8, 4")
            e("v_add_u32 v5, s32, v5")
            e("v_lshrrev_b32 v6, 4, v1")
            e("v_lshrrev_b32 v7, 1, v5")
            e("v_mul_u32_u24 v7, 2560, v7")
            e("v_lshl_add_u32 v7, v6, 4, v7")
            e("v_lshlrev_b32 v8, 3, v6")
            e("v_mul_u32_u24 v9, 1280, v5")
            e("v_add_u32 v9, v9, v8")
            e("v_and_b32 v10, 1, v5")
            e("v_lshlrev_b32 v10, 4, v10")
            e("s_mul_i32 s33, s9, 320")
            e("s_mul_i32 s34, s9, 160")
        for i in range(5):
            def f(i=i):
                if i == 0:
                    pre()
                k.vm("buffer_load_dwordx4 %s, v7, s[36:39], s33 offen offset:%d" % (vq(EP + 4 * i), i * 64), "ep")
            ops.append(f)
            ops.append(lambda i=i: k.vm("buffer_load_dwordx2 %s, v8, s[24:27], s34 offen offset:%d" % (vp(EP + 20 + 2 * i), i * 32), "ep"))
        return ops

    def areads(c, s, buf):
        slot = c % K5_SLOTS
        vb, off = (2, slot * 20480) if slot < 3 else (3, (slot - 3) * 20480)
        for i in range(5):
            e("ds_read_b128 %s, v%d offset:%d" % (vq(AB[buf] + 4 * i), vb, off + s * 5120 + i * 1024))

    for c in range(PD):
        for op in chunk_ops(c):
            op()
    k.srd(20, 6, H_BYTES)
    k.srd(24, 4, 1280)
    e("v_add_u32 v3, 61440, v2")
    for i in range(20):
        e("v_mov_b32 v%d, 0" % (ACC + i))
    for c in range(NCH):
        k.vmwait("c%d" % c)
        e("s_barrier")
        if c in (0, 1, 2, 4):
            k.stamp(1 + (0, 1, 2, 0, 3)[c])
        pend = chunk_ops(c + PD) if c + PD < NCH else (ep_ops() if c == NCH - PD else [])
        st = c % K5_SLOTS
        areads(c, 0, 0)
        for s in range(4):
            buf = s % 2
            if s < 3:
                areads(c, s + 1, 1 - buf)
                e("s_waitcnt lgkmcnt(5)")
            else:
                e("s_waitcnt lgkmcnt(0)")
            for i in range(5):
                e("v_mfma_f32_16x16x32_bf16 v[%d:%d], %s, %s, v[%d:%d]" % (
                    ACC + 4 * i, ACC + 4 * i + 3, vq(AB[buf] + 4 * i), vq(BF + st * 16 + s * 4), ACC + 4 * i, ACC + 4 * i + 3))
                if i in (1, 3) and pend:
                    pend.pop(0)()
            if pend:
                pend.pop(0)()
        while pend:
            pend.pop(0)()
    k.vmwait("ep")
    k.stamp(5)
    k.nop(10)
    t0, t1, p = 12, 13, 14
    for i in range(5):
        for hp in range(2):
            a0 = ACC + 4 * i + 2 * hp
            a1 = a0 + 1
            bias = EP + 20 + 2 * i + hp
            h0 = EP + 4 * i + 2 * hp
            h1 = h0 + 1
            e("v_cvt_pk_bf16_f32 v%d, v%d, v%d" % (p, a0, a1))
            e("v_lshlrev_b32 v%d, 16, v%d" % (a0, p))
            e("v_and_b32 v%d, 0xffff0000, v%d" % (a1, p))
            e("v_lshlrev_b32 v%d, 16, v%d" % (t0, bias))
            e("v_and_b32 v%d, 0xffff0000, v%d" % (t1, bias))
            e("v_pk_add_f32 %s, %s, %s" % (vp(a0), vp(a0), vp(t0)))
            e("v_cvt_pk_bf16_f32 v%d, v%d, v%d" % (p, a0, a1))
            e("v_lshlrev_b32 v%d, 16, v%d" % (a0, p))
            e("v_and_b32 v%d, 0xffff0000, v%d" % (a1, p))
            e("v_lshrrev_b32 v%d, v10, v%d" % (t0, h0))
            e("v_lshrrev_b32 v%d, v10, v%d" % (t1, h1))
            e("v_lshlrev_b32 v%d, 16, v%d" % (t0, t0))
            e("v_lshlrev_b32 v%d, 16, v%d" % (t1, t1))
            e("v_pk_add_f32 %s, %s, %s" % (vp(a0), vp(a0), vp(t0)))
            e("v_cvt_pk_bf16_f32 v%d, v%d, v%d" % (bias, a0, a1))
        e("buffer_store_dwordx2 %s, v9, s[20:23], s34 offen offset:%d" % (vp(EP + 20 + 2 * i), i * 32))
    k.stamp_flush(6)
    k.label("K5_end")
    k.rt_end(4)
    e("s_endpgm")
    return k, 208


def table(name, n):
    out = [".p2align 8", ".type %s,@object" % name, "%s:" % name]
    for i in range(n):
        a = -2.0 * math.pi * i / n
        out.append("    .long 0x%08x, 0x%08x" % (f2u(math.cos(a)), f2u(math.sin(a))))
    out.append(".size %s, %d" % (name, n * 8))
    return out


def main():
    ref = open(REF).read().splitlines()
    head = [l for l in ref if l.startswith(";") and "@launch" not in l and "Override" not in l and "grid=ceil" not in l]
    k1, v1 = gen_k1()
    k2, v2 = gen_k2()
    k3, v3 = gen_k3()
    k4, v4 = gen_k4()
    k5, v5 = gen_k5()
    L = list(head)
    L.append("; @launch kernel=k1_kernel grid=(%d,1,1) block=(320,1,1) lds=%d" % (K1_MAIN + K1_HELP, 2 * A2BASE))
    L.append("; @launch kernel=k2_kernel grid=(%d,1,1) block=(256,1,1) lds=%d" % (K2_MAIN + K2_HELP, K2_LDS))
    L.append("; @launch kernel=k3_kernel grid=(256,1,1) block=(320,1,1) lds=%d" % (2 * A2BASE))
    L.append("; @launch kernel=k4_kernel grid=(256,1,1) block=(256,1,1) lds=%d" % K4_LDS)
    L.append("; @launch kernel=k5_kernel grid=(256,1,1) block=(256,1,1) lds=%d" % K5_LDS)
    L.append('.amdgcn_target "amdgcn-amd-amdhsa--gfx950"')
    L.append(".text")
    for kk in (k1, k2, k3, k4, k5):
        L += kk.L
    L += table("tw640", 640)
    L += table("tw2048", 2048)
    L.append('.section .rodata,"a"')
    L.append(".p2align 6")
    for nm, v in (("k1_kernel", v1), ("k2_kernel", v2), ("k3_kernel", v3), ("k4_kernel", v4), ("k5_kernel", v5)):
        L.append(kernel_desc(nm, v))
    open(OUT, "w").write("\n".join(L) + "\n")
    print("wrote", OUT, len(L), "lines")


if __name__ == "__main__":
    main()
```

```python
import math, struct, sys

NAME = "sequential_preLN__spectral_gfnet__dense_activation_squared_relu__prompt"
OUT = "cdna_kernels/%s.s" % NAME
REF = OUT + ".ref"
if len(sys.argv) > 1 and sys.argv[1] == "stamp":
    OUT = "stamp.s"

WS_X1 = 0x0000000
WS_WT = 0x0600000
WS_H = 0x0A00000
WS_LN2F = 0x0D00000
WS_HF = 0x1000000
WS_W1F = 0x1800000
WS_W2F = 0x1A00000
X1_BYTES = 322 * 2048 * 8
WT_BYTES = 322 * 2048 * 4
H_BYTES = 2048 * 640 * 2
HF_BYTES = 2048 * 1536 * 2
WF_BYTES = 640 * 1536 * 2


def f2u(x):
    return struct.unpack("<I", struct.pack("<f", x))[0]


def vp(i):
    assert i % 2 == 0, i
    return "v[%d:%d]" % (i, i + 1)


def vq(i):
    assert i % 2 == 0, i
    return "v[%d:%d]" % (i, i + 3)


def sp(i):
    assert i % 2 == 0
    return "s[%d:%d]" % (i, i + 1)


def sq(i):
    assert i % 4 == 0
    return "s[%d:%d]" % (i, i + 3)


UID = 0
STAMP = len(sys.argv) > 1 and sys.argv[1] == 'stamp'


class K:
    def __init__(self):
        self.L = []
        self.q = []
        self.uid = 0

    def e(self, s):
        self.L.append("    " + s)

    def label(self, l):
        self.L.append(l + ":")

    def newlabel(self, base):
        global UID
        UID += 1
        return "L_%s_%d" % (base, UID)

    def vm(self, s, tag):
        self.e(s)
        self.q.append(tag)

    def vmwait(self, *tags):
        last = -1
        for i, t in enumerate(self.q):
            if t in tags:
                last = i
        assert last >= 0, tags
        n = len(self.q) - 1 - last
        assert n <= 63
        self.e("s_waitcnt vmcnt(%d)" % n)
        self.q = self.q[last + 1:]

    def vmreset(self):
        self.q = []

    def nop(self, n):
        while n > 0:
            m = min(n, 16)
            self.e("s_nop %d" % (m - 1))
            n -= m

    def stamp(self, i):
        if not STAMP:
            return
        self.e("s_waitcnt lgkmcnt(0)")
        self.e("s_memtime s[%d:%d]" % (70 + 2 * i, 71 + 2 * i))
        self.e("s_waitcnt lgkmcnt(0)")

    def rt_begin(self):
        if not STAMP:
            return
        self.e("s_memrealtime s[96:97]")

    def rt_end(self, kid):
        if not STAMP:
            return
        self.e("s_waitcnt vmcnt(0) lgkmcnt(0)")
        self.e("s_memrealtime s[98:99]")
        self.e("s_load_dwordx2 s[64:65], s[0:1], 80")
        self.e("s_waitcnt lgkmcnt(0)")
        self.e("s_mov_b64 exec, -1")
        self.e("s_add_u32 s60, s64, 0x%x" % (0x3000000 + kid * 0x10000))
        self.e("s_addc_u32 s61, s65, 0")
        self.e("s_and_b32 s61, s61, 0xffff")
        self.e("s_mov_b32 s62, 0x10000")
        self.e("s_mov_b32 s63, 0x20000")
        self.e("s_lshl_b32 s66, s2, 5")
        self.e("s_lshl_b32 s67, s3, 2")
        self.e("s_add_u32 s66, s66, s67")
        self.e("v_mov_b32 v0, 0")
        self.e("v_mov_b32 v1, s96")
        self.e("v_mov_b32 v2, s98")
        self.e("s_cmp_ge_u32 s3, 4")
        l2 = self.newlabel("rt")
        self.e("s_cbranch_scc1 %s" % l2)
        self.e("buffer_store_dword v1, v0, s[60:63], s66 offen")
        self.e("buffer_store_dword v2, v0, s[60:63], s66 offen offset:16")
        self.label(l2)

    def stamp_flush(self, n):
        if not STAMP:
            return
        l = self.newlabel("st")
        self.e("s_waitcnt vmcnt(0) lgkmcnt(0)")
        self.e("s_memtime s[%d:%d]" % (70 + 2 * n, 71 + 2 * n))
        self.e("s_load_dwordx2 s[64:65], s[0:1], 72")
        self.e("s_waitcnt lgkmcnt(0)")
        self.e("s_mov_b64 exec, -1")
        self.e("s_and_b32 s66, s2, 63")
        self.e("s_cmp_lg_u32 s66, 5")
        self.e("s_cbranch_scc1 %s" % l)
        self.e("s_cmp_lg_u32 s3, 0")
        self.e("s_cbranch_scc1 %s" % l)
        self.e("s_lshr_b32 s66, s2, 6")
        self.e("s_lshl_b32 s66, s66, 6")
        self.e("s_and_b32 s65, s65, 0xffff")
        self.e("s_mov_b32 s66, s66")
        self.e("s_mov_b32 s62, s64")
        self.e("s_mov_b32 s63, s65")
        self.e("s_mov_b32 s60, s64")
        self.e("s_mov_b32 s61, s65")
        self.e("s_mov_b32 s62, 256")
        self.e("s_mov_b32 s63, 0x20000")
        self.e("v_mov_b32 v0, 0")
        for i in range(n + 1):
            self.e("s_sub_u32 s67, s%d, s70" % (70 + 2 * i))
            self.e("v_mov_b32 v1, s67")
            self.e("buffer_store_dword v1, v0, s[60:63], s66 offen offset:%d" % (4 * i))
            self.e("s_nop 1")
        self.label(l)

    def srd(self, d, base, nbytes, add=0):
        self.e("s_add_u32 s%d, s%d, 0x%x" % (d, base, add))
        self.e("s_addc_u32 s%d, s%d, 0" % (d + 1, base + 1))
        self.e("s_and_b32 s%d, s%d, 0xffff" % (d + 1, d + 1))
        self.e("s_mov_b32 s%d, 0x%x" % (d + 2, nbytes))
        self.e("s_mov_b32 s%d, 0x20000" % (d + 3))

    def srd_table(self, d, label, nbytes):
        l = self.newlabel("pc")
        self.e("s_getpc_b64 %s" % sp(d))
        self.label(l)
        self.e("s_add_u32 s%d, s%d, %s - %s" % (d, d, label, l))
        self.e("s_addc_u32 s%d, s%d, 0" % (d + 1, d + 1))
        self.e("s_and_b32 s%d, s%d, 0xffff" % (d + 1, d + 1))
        self.e("s_mov_b32 s%d, 0x%x" % (d + 2, nbytes))
        self.e("s_mov_b32 s%d, 0x20000" % (d + 3))

    def sconst2(self, d, val):
        self.e("s_mov_b32 s%d, 0x%08x" % (d, f2u(val)))
        self.e("s_mov_b32 s%d, 0x%08x" % (d + 1, f2u(val)))

    def cadd(self, d, a, b):
        self.e("v_pk_add_f32 %s, %s, %s" % (vp(d), vp(a), vp(b)))

    def csub(self, d, a, b):
        self.e("v_pk_add_f32 %s, %s, %s neg_lo:[0,1] neg_hi:[0,1]" % (vp(d), vp(a), vp(b)))

    def cadd_i(self, d, a, b, sign):
        if sign > 0:
            self.e("v_pk_add_f32 %s, %s, %s op_sel:[0,1] op_sel_hi:[1,0] neg_lo:[0,1]" % (vp(d), vp(a), vp(b)))
        else:
            self.e("v_pk_add_f32 %s, %s, %s op_sel:[0,1] op_sel_hi:[1,0] neg_hi:[0,1]" % (vp(d), vp(a), vp(b)))

    def cfma_s(self, d, a, s, c, neg=False):
        m = " neg_lo:[1,0,0] neg_hi:[1,0,0]" if neg else ""
        self.e("v_pk_fma_f32 %s, %s, %s, %s%s" % (vp(d), vp(a), sp(s), vp(c), m))

    def cmul_s(self, d, a, s):
        self.e("v_pk_mul_f32 %s, %s, %s" % (vp(d), vp(a), sp(s)))

    def cfma_si(self, d, a, s, c, sign):
        if sign > 0:
            m = "neg_lo:[1,0,0]"
        else:
            m = "neg_hi:[1,0,0]"
        self.e("v_pk_fma_f32 %s, %s, %s, %s op_sel:[1,0,0] op_sel_hi:[0,1,1] %s" % (vp(d), vp(a), sp(s), vp(c), m))

    def cmul(self, d, x, w, t, conj=False):
        self.e("v_pk_mul_f32 %s, %s, %s op_sel:[0,0] op_sel_hi:[1,0]" % (vp(t), vp(x), vp(w)))
        m = "neg_hi:[1,0,0]" if conj else "neg_lo:[1,0,0]"
        self.e("v_pk_fma_f32 %s, %s, %s, %s op_sel:[1,1,0] op_sel_hi:[0,1,1] %s" % (vp(d), vp(x), vp(w), vp(t), m))

    def fft8(self, X, T, sR, inv):
        sg = 1 if inv else -1
        for j in range(4):
            self.cadd(T[j], X[j], X[j + 4])
            self.csub(T[j + 4], X[j], X[j + 4])
        b0, b1, b2, b3, u5, u7, d0, d1 = X
        self.cadd(b0, T[0], T[2])
        self.csub(b1, T[0], T[2])
        self.cadd(b2, T[1], T[3])
        self.csub(b3, T[1], T[3])
        a5, a7 = T[5], T[7]
        if not inv:
            self.e("v_pk_add_f32 %s, %s, %s op_sel:[0,1] op_sel_hi:[1,0] neg_hi:[0,1]" % (vp(u5), vp(a5), vp(a5)))
            self.e("v_pk_add_f32 %s, %s, %s op_sel:[0,1] op_sel_hi:[1,0] neg_lo:[1,0] neg_hi:[1,1]" % (vp(u7), vp(a7), vp(a7)))
        else:
            self.e("v_pk_add_f32 %s, %s, %s op_sel:[0,1] op_sel_hi:[1,0] neg_lo:[0,1]" % (vp(u5), vp(a5), vp(a5)))
            self.e("v_pk_add_f32 %s, %s, %s op_sel:[0,1] op_sel_hi:[1,0] neg_lo:[1,1] neg_hi:[1,0]" % (vp(u7), vp(a7), vp(a7)))
        self.cadd_i(d0, T[4], T[6], sg)
        self.cadd_i(d1, T[4], T[6], -sg)
        d2u, d3u = T[5], T[7]
        self.cadd(d2u, u5, u7)
        self.csub(d3u, u5, u7)
        self.cadd(T[0], b0, b2)
        self.csub(T[4], b0, b2)
        self.cadd_i(T[2], b1, b3, sg)
        self.cadd_i(T[6], b1, b3, -sg)
        self.cfma_s(T[1], d2u, sR, d0)
        self.cfma_s(T[5], d2u, sR, d0, neg=True)
        self.cfma_si(T[3], d3u, sR, d1, sg)
        self.cfma_si(T[7], d3u, sR, d1, -sg)

    def fft4(self, X, T, inv):
        sg = 1 if inv else -1
        self.cadd(T[0], X[0], X[2])
        self.csub(T[1], X[0], X[2])
        self.cadd(T[2], X[1], X[3])
        self.csub(T[3], X[1], X[3])
        self.cadd(X[0], T[0], T[2])
        self.csub(X[2], T[0], T[2])
        self.cadd_i(X[1], T[1], T[3], sg)
        self.cadd_i(X[3], T[1], T[3], -sg)

    def dft5(self, Y, X, C, inv):
        sg = 1 if inv else -1
        t1, t2, t3, t4, s, a, b, c, d = X[:9]
        self.cadd(t1, Y[1], Y[4])
        self.cadd(t2, Y[2], Y[3])
        self.csub(t3, Y[1], Y[4])
        self.csub(t4, Y[2], Y[3])
        self.cfma_s(a, t1, C['c1'], Y[0])
        self.cfma_s(b, t1, C['c2'], Y[0])
        self.cmul_s(c, t3, C['s1'])
        self.cmul_s(d, t3, C['s2'])
        self.cadd(s, t1, t2)
        self.cfma_s(a, t2, C['c2'], a)
        self.cfma_s(b, t2, C['c1'], b)
        self.cfma_s(c, t4, C['s2'], c)
        self.cfma_s(d, t4, C['s1'], d, neg=True)
        self.cadd(Y[0], Y[0], s)
        self.cadd_i(Y[1], a, c, sg)
        self.cadd_i(Y[4], a, c, -sg)
        self.cadd_i(Y[2], b, d, sg)
        self.cadd_i(Y[3], b, d, -sg)

    def fft10(self, X, T, C, inv):
        for n2 in range(5):
            i0 = (2 * n2) % 10
            i1 = (5 + 2 * n2) % 10
            self.cadd(T[n2], X[i0], X[i1])
            self.csub(T[5 + n2], X[i0], X[i1])
        self.dft5(T[0:5], X, C, inv)
        self.dft5(T[5:10], X, C, inv)
        R = [None] * 10
        for k2 in range(5):
            R[(6 * k2) % 10] = T[k2]
            R[(5 + 6 * k2) % 10] = T[5 + k2]
        return R

    def consts5(self, base):
        C = {'c1': base, 'c2': base + 2, 's1': base + 4, 's2': base + 6}
        self.sconst2(C['c1'], math.cos(2 * math.pi / 5))
        self.sconst2(C['c2'], math.cos(4 * math.pi / 5))
        self.sconst2(C['s1'], math.sin(2 * math.pi / 5))
        self.sconst2(C['s2'], math.sin(4 * math.pi / 5))
        return C

    def allreduce2(self, a, b, ta, tb):
        for perm in ("quad_perm:[1,0,3,2]", "quad_perm:[2,3,0,1]", "row_half_mirror", "row_mirror"):
            self.nop(2)
            self.e("v_add_f32_dpp v%d, v%d, v%d %s row_mask:0xf bank_mask:0xf" % (a, a, a, perm))
            self.e("v_add_f32_dpp v%d, v%d, v%d %s row_mask:0xf bank_mask:0xf" % (b, b, b, perm))
        for sw in ("v_permlane16_swap_b32", "v_permlane32_swap_b32"):
            self.e("v_mov_b32 v%d, v%d" % (ta, a))
            self.e("v_mov_b32 v%d, v%d" % (tb, b))
            self.nop(2)
            self.e("%s v%d, v%d" % (sw, a, ta))
            self.e("%s v%d, v%d" % (sw, b, tb))
            self.nop(1)
            self.e("v_add_f32 v%d, v%d, v%d" % (a, a, ta))
            self.e("v_add_f32 v%d, v%d, v%d" % (b, b, tb))

    def div640(self, d, s, t, sInv, s640):
        self.e("v_mul_f32 v%d, s%d, v%d" % (d, sInv, s))
        self.e("v_fma_f32 v%d, -v%d, s%d, v%d" % (t, d, s640, s))
        self.e("v_fma_f32 v%d, v%d, s%d, v%d" % (d, t, sInv, d))

    def layernorm2(self, A, B, OUTP, tmp, sInv, s640, sEps):
        sa, sb, ta, tb, ma, mb, va, vb, ra, rb, p, d0, d1, e0 = tmp[:14]
        self.e("v_add_f32 v%d, v%d, v%d" % (sa, A[0], A[1]))
        self.e("v_add_f32 v%d, v%d, v%d" % (sb, B[0], B[1]))
        for j in range(2, 10):
            self.e("v_add_f32 v%d, v%d, v%d" % (sa, sa, A[j]))
            self.e("v_add_f32 v%d, v%d, v%d" % (sb, sb, B[j]))
        self.allreduce2(sa, sb, ta, tb)
        self.div640(ma, sa, ta, sInv, s640)
        self.div640(mb, sb, tb, sInv, s640)
        for j in range(10):
            self.e("v_sub_f32 v%d, v%d, v%d" % (d0, A[j], ma))
            self.e("v_sub_f32 v%d, v%d, v%d" % (d1, B[j], mb))
            if j == 0:
                self.e("v_mul_f32 v%d, v%d, v%d" % (sa, d0, d0))
                self.e("v_mul_f32 v%d, v%d, v%d" % (sb, d1, d1))
            else:
                self.e("v_fma_f32 v%d, v%d, v%d, v%d" % (sa, d0, d0, sa))
                self.e("v_fma_f32 v%d, v%d, v%d, v%d" % (sb, d1, d1, sb))
        self.allreduce2(sa, sb, ta, tb)
        self.div640(va, sa, ta, sInv, s640)
        self.div640(vb, sb, tb, sInv, s640)
        self.e("v_cvt_pk_bf16_f32 v%d, v%d, v%d" % (p, ma, mb))
        self.e("v_lshlrev_b32 v%d, 16, v%d" % (ma, p))
        self.e("v_and_b32 v%d, 0xffff0000, v%d" % (mb, p))
        self.e("v_cvt_pk_bf16_f32 v%d, v%d, v%d" % (p, va, vb))
        self.e("v_lshlrev_b32 v%d, 16, v%d" % (va, p))
        self.e("v_and_b32 v%d, 0xffff0000, v%d" % (vb, p))
        self.e("v_add_f32 v%d, s%d, v%d" % (va, sEps, va))
        self.e("v_add_f32 v%d, s%d, v%d" % (vb, sEps, vb))
        self.e("v_cvt_pk_bf16_f32 v%d, v%d, v%d" % (p, va, vb))
        self.e("v_lshlrev_b32 v%d, 16, v%d" % (va, p))
        self.e("v_and_b32 v%d, 0xffff0000, v%d" % (vb, p))
        self.e("v_sqrt_f32 v%d, v%d" % (va, va))
        self.e("v_sqrt_f32 v%d, v%d" % (vb, vb))
        self.nop(1)
        self.e("v_cvt_pk_bf16_f32 v%d, v%d, v%d" % (p, va, vb))
        self.e("v_lshlrev_b32 v%d, 16, v%d" % (va, p))
        self.e("v_and_b32 v%d, 0xffff0000, v%d" % (vb, p))
        self.e("v_rcp_f32 v%d, v%d" % (ra, va))
        self.e("v_rcp_f32 v%d, v%d" % (rb, vb))
        self.nop(1)
        for j in range(10):
            o = OUTP[j]
            self.e("v_sub_f32 v%d, v%d, v%d" % (d0, A[j], ma))
            self.e("v_sub_f32 v%d, v%d, v%d" % (d1, B[j], mb))
            self.e("v_cvt_pk_bf16_f32 v%d, v%d, v%d" % (p, d0, d1))
            self.e("v_lshlrev_b32 v%d, 16, v%d" % (d0, p))
            self.e("v_and_b32 v%d, 0xffff0000, v%d" % (d1, p))
            self.e("v_mul_f32 v%d, v%d, v%d" % (o, d0, ra))
            self.e("v_mul_f32 v%d, v%d, v%d" % (o + 1, d1, rb))
            self.e("v_fma_f32 v%d, -v%d, v%d, v%d" % (d0, o, va, d0))
            self.e("v_fma_f32 v%d, -v%d, v%d, v%d" % (d1, o + 1, vb, d1))
            self.e("v_fma_f32 v%d, v%d, v%d, v%d" % (o, d0, ra, o))
            self.e("v_fma_f32 v%d, v%d, v%d, v%d" % (o + 1, d1, rb, o + 1))
            self.e("v_cvt_pk_bf16_f32 v%d, v%d, v%d" % (p, o, o + 1))
            self.e("v_lshlrev_b32 v%d, 16, v%d" % (o, p))
            self.e("v_and_b32 v%d, 0xffff0000, v%d" % (o + 1, p))


def kernel_header(k, name):
    k.L.append(".p2align 8")
    k.L.append(".globl %s" % name)
    k.L.append(".type %s,@function" % name)
    k.label(name)


def kernel_desc(name, vgpr, sgpr=102):
    vg = (vgpr + 3) // 4 * 4
    return "\n".join([
        ".amdhsa_kernel %s" % name,
        "  .amdhsa_next_free_vgpr %d" % vgpr,
        "  .amdhsa_next_free_sgpr %d" % sgpr,
        "  .amdhsa_accum_offset %d" % vg,
        "  .amdhsa_group_segment_fixed_size 0",
        "  .amdhsa_kernarg_size 88",
        "  .amdhsa_user_sgpr_count 2",
        "  .amdhsa_user_sgpr_kernarg_segment_ptr 1",
        "  .amdhsa_system_sgpr_workgroup_id_x 1",
        ".end_amdhsa_kernel"])


R2 = 1.0 / math.sqrt(2.0)
P1 = 576
A2BASE = 40 * P1
P3 = 5248

def layernorm_pk(k, P, tmp, sC):
    e = k.e
    S, M, V, R, D, Q, TT, U = tmp[:8]
    e("v_pk_add_f32 %s, %s, %s" % (vp(S), vp(P[0]), vp(P[1])))
    for j in range(2, 10):
        e("v_pk_add_f32 %s, %s, %s" % (vp(S), vp(S), vp(P[j])))
    k.allreduce2(S, S + 1, TT, TT + 1)
    e("v_pk_mul_f32 %s, %s, %s" % (vp(M), vp(S), sp(sC['inv640'])))
    e("v_pk_fma_f32 %s, %s, %s, %s neg_lo:[1,0,0] neg_hi:[1,0,0]" % (vp(TT), vp(M), sp(sC['c640']), vp(S)))
    e("v_pk_fma_f32 %s, %s, %s, %s" % (vp(M), vp(TT), sp(sC['inv640']), vp(M)))
    for j in range(10):
        e("v_pk_add_f32 %s, %s, %s neg_lo:[0,1] neg_hi:[0,1]" % (vp(D), vp(P[j]), vp(M)))
        if j == 0:
            e("v_pk_mul_f32 %s, %s, %s" % (vp(S), vp(D), vp(D)))
        else:
            e("v_pk_fma_f32 %s, %s, %s, %s" % (vp(S), vp(D), vp(D), vp(S)))
    k.allreduce2(S, S + 1, TT, TT + 1)
    e("v_pk_mul_f32 %s, %s, %s" % (vp(V), vp(S), sp(sC['inv640'])))
    e("v_pk_fma_f32 %s, %s, %s, %s neg_lo:[1,0,0] neg_hi:[1,0,0]" % (vp(TT), vp(V), sp(sC['c640']), vp(S)))
    e("v_pk_fma_f32 %s, %s, %s, %s" % (vp(V), vp(TT), sp(sC['inv640']), vp(V)))

    def rnd(x):
        e("v_cvt_pk_bf16_f32 v%d, v%d, v%d" % (U, x, x + 1))
        e("v_lshlrev_b32 v%d, 16, v%d" % (x, U))
        e("v_and_b32 v%d, 0xffff0000, v%d" % (x + 1, U))
    rnd(M)
    rnd(V)
    e("v_pk_add_f32 %s, %s, %s" % (vp(V), vp(V), sp(sC['eps'])))
    rnd(V)
    e("v_sqrt_f32 v%d, v%d" % (V, V))
    e("v_sqrt_f32 v%d, v%d" % (V + 1, V + 1))
    k.nop(1)
    rnd(V)
    e("v_rcp_f32 v%d, v%d" % (R, V))
    e("v_rcp_f32 v%d, v%d" % (R + 1, V + 1))
    k.nop(1)
    for j in range(10):
        e("v_pk_add_f32 %s, %s, %s neg_lo:[0,1] neg_hi:[0,1]" % (vp(D), vp(P[j]), vp(M)))
        rnd(D)
        e("v_pk_mul_f32 %s, %s, %s" % (vp(Q), vp(D), vp(R)))
        e("v_pk_fma_f32 %s, %s, %s, %s neg_lo:[1,0,0] neg_hi:[1,0,0]" % (vp(D), vp(Q), vp(V), vp(D)))
        e("v_pk_fma_f32 %s, %s, %s, %s" % (vp(Q), vp(D), vp(R), vp(Q)))
        e("v_cvt_pk_bf16_f32 v%d, v%d, v%d" % (P[j], Q, Q + 1))


def ln_consts(k, base):
    sC = {'inv640': base, 'c640': base + 2, 'eps': base + 4}
    k.sconst2(sC['inv640'], 1.0 / 640.0)
    k.sconst2(sC['c640'], 640.0)
    k.sconst2(sC['eps'], 1e-5)
    return sC


K1_MAIN = 256
K1_HELP = 154


def gen_k1():
    k = K()
    kernel_header(k, "k1_kernel")
    k.rt_begin()
    e = k.e
    e("s_load_dwordx2 s[4:5], s[0:1], 0")
    e("s_load_dwordx4 s[8:11], s[0:1], 8")
    e("s_load_dwordx2 s[6:7], s[0:1], 80")
    e("v_lshrrev_b32 v2, 6, v0")
    e("v_and_b32 v1, 63, v0")
    e("s_nop 0")
    e("v_readfirstlane_b32 s3, v2")
    e("s_waitcnt lgkmcnt(0)")
    k.stamp(0)
    e("s_cmp_ge_u32 s2, %d" % K1_MAIN)
    e("s_cbranch_scc1 K1_helper")
    k.srd(12, 4, H_BYTES)
    k.srd(16, 6, X1_BYTES, WS_X1)
    k.srd_table(20, "twr", 9 * 512 + 7 * 64)
    e("s_mov_b32 s36, 4096")
    X = [10 + 2 * i for i in range(10)]
    T = [30 + 2 * i for i in range(10)]
    TW1 = [50 + 2 * i for i in range(9)]
    TW2 = [68 + 2 * i for i in range(7)]
    TMP = [82 + 2 * i for i in range(8)]
    e("v_lshrrev_b32 v3, 3, v0")
    e("v_and_b32 v4, 7, v0")
    e("s_cmp_ge_u32 s3, 4")
    e("s_cbranch_scc1 K1_ld_skip")
    e("s_lshl_b32 s37, s2, 3")
    e("s_lshl_b32 s38, s3, 1")
    e("s_add_u32 s37, s37, s38")
    e("s_mul_i32 s37, s37, 1280")
    e("v_lshlrev_b32 v5, 1, v1")
    for j in range(10):
        e("buffer_load_ushort v%d, v5, s[12:15], s37 offen offset:%d" % (X[j], j * 128))
        e("buffer_load_ushort v%d, v5, s[12:15], s37 offen offset:%d" % (X[j] + 1, 1280 + j * 128))
    e("v_lshlrev_b32 v5, 3, v1")
    for q1 in range(1, 10):
        e("buffer_load_dwordx2 %s, v5, s[20:23], 0 offen offset:%d" % (vp(TW1[q1 - 1]), (q1 - 1) * 512 if q1 < 9 else 0) if q1 < 9 else
          "buffer_load_dwordx2 %s, v5, s[20:23], s36 offen" % vp(TW1[q1 - 1]))
    k.label("K1_ld_skip")
    e("v_lshlrev_b32 v5, 3, v4")
    for q2 in range(1, 8):
        e("buffer_load_dwordx2 %s, v5, s[20:23], s36 offen offset:%d" % (vp(TW2[q2 - 1]), 512 + (q2 - 1) * 64))
    k.sconst2(24, R2)
    C5 = k.consts5(26)
    sC = ln_consts(k, 40)
    e("s_cmp_ge_u32 s3, 4")
    e("s_cbranch_scc1 K1_s1_done")
    e("s_waitcnt vmcnt(16)")
    k.stamp(1)
    for j in range(10):
        e("v_lshlrev_b32 v%d, 16, v%d" % (X[j], X[j]))
        e("v_lshlrev_b32 v%d, 16, v%d" % (X[j] + 1, X[j] + 1))
    layernorm_pk(k, X, TMP, sC)
    for j in range(10):
        e("v_and_b32 v%d, 0xffff0000, v%d" % (X[j] + 1, X[j]))
        e("v_lshlrev_b32 v%d, 16, v%d" % (X[j], X[j]))
    R = k.fft10(X, T, C5, False)
    e("s_waitcnt vmcnt(7)")
    k.stamp(2)
    e("s_mul_i32 s38, s3, %d" % (10 * P1))
    e("v_lshlrev_b32 v5, 3, v1")
    e("v_add_u32 v5, s38, v5")
    for q1 in range(10):
        if q1:
            k.cmul(R[q1], R[q1], TW1[q1 - 1], X[0])
        e("ds_write_b64 v5, %s offset:%d" % (vp(R[q1]), q1 * P1))
    k.label("K1_s1_done")
    e("s_waitcnt vmcnt(0) lgkmcnt(0)")
    e("s_barrier")
    k.stamp(3)
    X8 = X[:8]
    T8 = T[:8]
    e("v_mul_u32_u24 v5, %d, v3" % P1)
    e("v_lshl_add_u32 v5, v4, 3, v5")
    for j in range(8):
        e("ds_read_b64 %s, v5 offset:%d" % (vp(X8[j]), j * 64))
    e("s_waitcnt lgkmcnt(0)")
    k.fft8(X8, T8, 24, False)
    for q2 in range(8):
        if q2:
            k.cmul(T8[q2], T8[q2], TW2[q2 - 1], X8[0])
        e("ds_write_b64 v5, %s offset:%d" % (vp(T8[q2]), A2BASE + q2 * 64))
    e("s_waitcnt lgkmcnt(0)")
    e("s_barrier")
    k.stamp(4)
    e("v_mul_u32_u24 v5, %d, v3" % P1)
    e("v_lshl_add_u32 v5, v4, 6, v5")
    for j in range(4):
        e("ds_read_b128 %s, v5 offset:%d" % (vq(X8[2 * j]), A2BASE + j * 16))
    e("v_mul_u32_u24 v6, 205, v3")
    e("v_lshrrev_b32 v6, 11, v6")
    e("v_mul_u32_u24 v7, 10, v6")
    e("v_sub_u32 v7, v3, v7")
    e("v_mul_u32_u24 v8, 10, v4")
    e("v_add_u32 v7, v7, v8")
    e("v_lshlrev_b32 v7, 3, v7")
    e("v_mul_u32_u24 v6, %d, v6" % P3)
    e("v_add_u32 v7, v7, v6")
    e("s_waitcnt lgkmcnt(0)")
    k.fft8(X8, T8, 24, False)
    for q3 in range(8):
        e("ds_write_b64 v7, %s offset:%d" % (vp(T8[q3]), q3 * 640))
    e("v_and_b32 v8, 3, v0")
    e("v_lshrrev_b32 v9, 2, v0")
    e("v_mul_u32_u24 v5, %d, v8" % P3)
    e("v_sub_u32 v6, 400, v9")
    e("v_lshl_add_u32 v6, v6, 3, v5")
    e("v_lshl_add_u32 v5, v9, 3, v5")
    e("v_cmp_gt_u32 vcc, 4, v0")
    e("v_add_u32 v3, %d, v6" % (3 * 640))
    e("v_subrev_u32 v4, %d, v3" % (320 * 8))
    e("v_lshlrev_b32 v7, 14, v9")
    e("v_cndmask_b32 v3, v3, v4, vcc")
    e("v_lshl_add_u32 v7, v8, 4, v7")
    e("s_lshl_b32 s37, s2, 6")
    e("s_waitcnt lgkmcnt(0)")
    e("s_barrier")
    k.stamp(5)
    for i in range(4):
        e("ds_read_b64 %s, v5 offset:%d" % (vp(X[2 * i]), i * 640))
        if i == 0:
            e("ds_read_b64 %s, v3" % vp(X[1]))
        else:
            e("ds_read_b64 %s, v6 offset:%d" % (vp(X[2 * i + 1]), (3 - i) * 640))
    e("s_waitcnt lgkmcnt(0)")
    for i in range(4):
        z, y = X[2 * i], X[2 * i + 1]
        o = T[2 * i]
        e("v_pk_add_f32 %s, %s, %s neg_hi:[0,1]" % (vp(o), vp(z), vp(y)))
        e("v_pk_add_f32 %s, %s, %s op_sel:[1,1] op_sel_hi:[0,0] neg_hi:[1,0]" % (vp(o + 2), vp(z), vp(y)))
    e("s_cmp_lg_u32 s3, 0")
    e("s_cbranch_scc1 K1_st")
    z, y = X[0], X[1]
    o = T[0]
    s_ = TMP[0]
    e("v_pk_add_f32 %s, %s, %s" % (vp(s_), vp(z), vp(z)))
    e("v_cndmask_b32 v%d, v%d, v%d, vcc" % (o, o, s_))
    e("v_cndmask_b32 v%d, v%d, 0, vcc" % (o + 1, o + 1))
    e("v_cndmask_b32 v%d, v%d, v%d, vcc" % (o + 2, o + 2, s_ + 1))
    e("v_cndmask_b32 v%d, v%d, 0, vcc" % (o + 3, o + 3))
    q = 50
    e("v_add_f32 v%d, v%d, v%d" % (q, y, y))
    e("v_mov_b32 v%d, 0" % (q + 1))
    e("v_add_f32 v%d, v%d, v%d" % (q + 2, y + 1, y + 1))
    e("v_mov_b32 v%d, 0" % (q + 3))
    e("s_add_u32 s38, s37, 0x%x" % (320 * 16384))
    e("s_and_saveexec_b64 s[46:47], vcc")
    e("buffer_store_dwordx4 %s, v7, s[16:19], s38 offen" % vq(q))
    e("s_mov_b64 exec, s[46:47]")
    k.label("K1_st")
    for i in range(4):
        e("buffer_store_dwordx4 %s, v7, s[16:19], s37 offen" % vq(T[2 * i]))
        if i < 3:
            e("s_add_u32 s37, s37, 0x%x" % (80 * 16384))
    k.stamp_flush(6)
    k.label("K1_end")
    k.rt_end(0)
    e("s_endpgm")
    k.label("K1_helper")
    e("s_sub_u32 s4, s2, %d" % K1_MAIN)
    e("s_mul_i32 s4, s4, 5")
    e("s_add_u32 s4, s4, s3")
    e("s_cmp_ge_u32 s4, 768")
    e("s_cbranch_scc1 K1_end")
    k.srd(12, 8, 2048 * 321 * 2)
    k.srd(16, 10, 2048 * 321 * 2)
    k.srd(20, 6, WT_BYTES, WS_WT)
    e("s_and_b32 s5, s4, 127")
    e("s_lshr_b32 s24, s4, 7")
    e("s_lshr_b32 s25, s5, 3")
    e("s_and_b32 s26, s5, 7")
    e("s_lshl_b32 s26, s26, 5")
    e("s_add_u32 s25, s25, s26")
    e("s_mul_i32 s25, s25, 642")
    e("s_lshl_b32 s27, s24, 6")
    e("v_add_u32 v2, s27, v1")
    e("v_lshlrev_b32 v3, 1, v2")
    e("v_lshlrev_b32 v4, 13, v2")
    e("s_lshl_b32 s28, s5, 6")
    e("v_cmp_gt_u32 vcc, 321, v2")
    e("s_and_saveexec_b64 s[40:41], vcc")
    e("s_cbranch_execz K1_end")
    for ee in range(2):
        for q3 in range(8):
            i = ee * 8 + q3
            e("s_add_u32 s29, s25, %d" % ((16 * ee + 256 * q3) * 642))
            e("buffer_load_ushort v%d, v3, s[12:15], s29 offen" % (10 + i))
            e("buffer_load_ushort v%d, v3, s[16:19], s29 offen" % (26 + i))
    e("s_waitcnt vmcnt(0)")
    for i in range(16):
        e("v_lshl_or_b32 v%d, v%d, 16, v%d" % (10 + i, 26 + i, 10 + i))
    for i in range(4):
        e("buffer_store_dwordx4 %s, v4, s[20:23], s28 offen offset:%d" % (vq(10 + 4 * i), i * 16))
    k.rt_end(0)
    e("s_endpgm")
    return k, 100


def wprep_variant(k, which):
    e = k.e
    if which == 1:
        pitch, per, srcofs, dst = 3072, 10, 32, WS_W1F
    else:
        pitch, per, srcofs, dst = 1280, 12, 48, WS_W2F
    e("s_load_dwordx2 s[8:9], s[0:1], %d" % srcofs)
    magic = (1 << 20) // per + 1
    e("s_mul_i32 s5, s4, %d" % magic)
    e("s_lshr_b32 s5, s5, 20")
    e("s_mul_i32 s24, s5, %d" % per)
    e("s_sub_u32 s24, s4, s24")
    e("s_waitcnt lgkmcnt(0)")
    k.srd(12, 8, WF_BYTES)
    k.srd(16, 6, WF_BYTES, dst)
    e("v_lshlrev_b32 v4, 4, v1")
    if which == 1:
        e("v_lshrrev_b32 v2, 5, v1")
        e("v_and_b32 v3, 31, v1")
        e("v_mul_u32_u24 v2, %d, v2" % (8 * pitch))
        e("v_lshl_add_u32 v2, v3, 1, v2")
        e("s_lshl_b32 s25, s5, 6")
        e("s_mul_i32 s26, s24, %d" % (64 * pitch))
        e("s_add_u32 s25, s25, s26")
        e("s_mul_i32 s27, s5, %d" % (40 * 1024))
        e("s_lshl_b32 s26, s24, 12")
        e("s_add_u32 s27, s27, s26")
        kper, dstep = 16, 1024
        joff = lambda j: j
    else:
        e("v_lshrrev_b32 v2, 5, v1")
        e("v_lshrrev_b32 v3, 4, v1")
        e("v_and_b32 v3, 1, v3")
        e("v_lshl_add_u32 v2, v2, 2, v3")
        e("v_mul_u32_u24 v2, %d, v2" % (4 * pitch))
        e("v_and_b32 v3, 15, v1")
        e("v_lshl_add_u32 v2, v3, 1, v2")
        e("s_lshl_b32 s25, s5, 5")
        e("s_mul_i32 s26, s24, %d" % (128 * pitch))
        e("s_add_u32 s25, s25, s26")
        e("s_mul_i32 s26, s5, 52429")
        e("s_lshr_b32 s26, s26, 18")
        e("s_mul_i32 s27, s26, 5")
        e("s_sub_u32 s27, s5, s27")
        e("s_mul_i32 s26, s26, 240")
        e("s_add_u32 s27, s27, s26")
        e("s_mul_i32 s26, s24, 20")
        e("s_add_u32 s27, s27, s26")
        e("s_lshl_b32 s27, s27, 10")
        kper, dstep = 32, 5120
        joff = lambda j: 8 * (j >> 2) + (j & 3)
    for sl in range(4):
        for j in range(8):
            e("s_add_u32 s28, s25, %d" % ((kper * sl + joff(j)) * pitch))
            e("buffer_load_ushort v%d, v2, s[12:15], s28 offen" % (10 + sl * 8 + j))
    e("s_waitcnt vmcnt(0)")
    for sl in range(4):
        for jj in range(4):
            e("v_lshl_or_b32 v%d, v%d, 16, v%d" % (50 + sl * 4 + jj, 10 + sl * 8 + 2 * jj + 1, 10 + sl * 8 + 2 * jj))
    for sl in range(4):
        e("buffer_store_dwordx4 %s, v4, s[16:19], s27 offen sc1" % vq(50 + sl * 4))
        if sl < 3:
            e("s_add_u32 s27, s27, %d" % dstep)
    k.rt_end(1)
    e("s_endpgm")


K2_MAIN = 321
K2_HELP = 480
PE = 1088
E1B = 0
E2B = 16 * PE
PE2 = 1296
K2_LDS = 16 * PE + 16 * PE2


def cmul_sc(k, d, x, sw, t, conj=False):
    k.e("v_pk_mul_f32 %s, %s, %s op_sel:[0,0] op_sel_hi:[1,0]" % (vp(t), vp(x), sp(sw)))
    m = "neg_hi:[1,0,0]" if conj else "neg_lo:[1,0,0]"
    k.e("v_pk_fma_f32 %s, %s, %s, %s op_sel:[1,1,0] op_sel_hi:[0,1,1] %s" % (vp(d), vp(x), sp(sw), vp(t), m))


def fft16(k, X, T, SW, inv):
    sg = 1 if inv else -1
    for b in range(4):
        x0, x1, x2, x3 = X[b], X[4 + b], X[8 + b], X[12 + b]
        t0, t1, t2, t3 = T[4 * b], T[4 * b + 1], T[4 * b + 2], T[4 * b + 3]
        k.cadd(t0, x0, x2)
        k.csub(t1, x0, x2)
        k.cadd(t2, x1, x3)
        k.csub(t3, x1, x3)
        k.cadd(x0, t0, t2)
        k.csub(x2, t0, t2)
        k.cadd_i(x1, t1, t3, sg)
        k.cadd_i(x3, t1, t3, -sg)
    for b in range(1, 4):
        for k1 in range(1, 4):
            r = X[4 * k1 + b]
            cmul_sc(k, r, r, SW[(b * k1)], T[0], conj=inv)
    out = [None] * 16
    for k1 in range(4):
        y0, y1, y2, y3 = X[4 * k1], X[4 * k1 + 1], X[4 * k1 + 2], X[4 * k1 + 3]
        t0, t1, t2, t3 = T[4 * k1], T[4 * k1 + 1], T[4 * k1 + 2], T[4 * k1 + 3]
        k.cadd(t0, y0, y2)
        k.csub(t1, y0, y2)
        k.cadd(t2, y1, y3)
        k.csub(t3, y1, y3)
        k.cadd(y0, t0, t2)
        k.csub(y2, t0, t2)
        k.cadd_i(y1, t1, t3, sg)
        k.cadd_i(y3, t1, t3, -sg)
        out[k1] = y0
        out[k1 + 4] = y1
        out[k1 + 8] = y2
        out[k1 + 12] = y3
    return out


def gen_k2():
    k = K()
    kernel_header(k, "k2_kernel")
    k.rt_begin()
    e = k.e
    e("s_load_dwordx2 s[6:7], s[0:1], 80")
    e("v_lshrrev_b32 v2, 6, v0")
    e("v_and_b32 v1, 63, v0")
    e("s_nop 0")
    e("v_readfirstlane_b32 s3, v2")
    e("s_waitcnt lgkmcnt(0)")
    k.stamp(0)
    e("s_cmp_ge_u32 s2, %d" % K2_MAIN)
    e("s_cbranch_scc1 K2_helper")
    k.srd(12, 6, X1_BYTES, WS_X1)
    k.srd(16, 6, WT_BYTES, WS_WT)
    k.srd_table(20, "twk2", 15 * 1024 + 15 * 64)
    X = [10 + 2 * i for i in range(16)]
    T = [42 + 2 * i for i in range(16)]
    TW1 = [74 + 2 * i for i in range(15)]
    TW2 = [104 + 2 * i for i in range(15)]
    WV = 134
    e("s_lshl_b32 s28, s2, 14")
    e("v_lshlrev_b32 v5, 3, v0")
    for j in range(16):
        k.vm("buffer_load_dwordx2 %s, v5, s[12:15], s28 offen offset:%d" % (vp(X[j]), (j * 1024) % 4096), "x")
        if j % 4 == 3 and j < 15:
            e("s_add_u32 s28, s28, 4096")
    e("s_mov_b32 s29, 0")
    for q in range(1, 16):
        k.vm("buffer_load_dwordx2 %s, v5, s[20:23], s29 offen offset:%d" % (vp(TW1[q - 1]), ((q - 1) * 1024) % 4096), "tw1")
        if (q - 1) % 4 == 3:
            e("s_add_u32 s29, s29, 4096")
    e("v_and_b32 v3, 7, v0")
    e("v_lshlrev_b32 v7, 3, v3")
    e("s_mov_b32 s29, %d" % (15 * 1024))
    for q in range(1, 16):
        k.vm("buffer_load_dwordx2 %s, v7, s[20:23], s29 offen offset:%d" % (vp(TW2[q - 1]), (q - 1) * 64), "tw2")
    e("s_lshl_b32 s29, s2, 13")
    e("v_lshlrev_b32 v6, 6, v0")
    for i in range(4):
        k.vm("buffer_load_dwordx4 %s, v6, s[16:19], s29 offen offset:%d" % (vq(WV + 4 * i), 16 * i), "w")
    k.sconst2(24, R2)
    k.sconst2(26, 1.0 / (2.0 * 2048 * 640))
    SW = {}
    base = 30
    for ex in (1, 2, 3, 4, 6, 9):
        SW[ex] = base
        a = -2.0 * math.pi * ex / 16
        e("s_mov_b32 s%d, 0x%08x" % (base, f2u(math.cos(a))))
        e("s_mov_b32 s%d, 0x%08x" % (base + 1, f2u(math.sin(a))))
        base += 2
    e("v_lshrrev_b32 v4, 3, v0")
    e("v_mul_u32_u24 v8, %d, v4" % PE2)
    e("v_mul_u32_u24 v4, %d, v4" % PE)
    e("v_lshl_add_u32 v6, v3, 3, v4")
    e("v_mul_u32_u24 v7, 160, v3")
    e("v_add_u32 v7, v7, v8")
    e("v_lshl_add_u32 v8, v3, 3, v8")
    k.vmwait("x")
    k.stamp(1)
    R = fft16(k, X, T, SW, False)
    k.vmwait("tw1")
    k.stamp(2)
    for q in range(16):
        if q:
            k.cmul(R[q], R[q], TW1[q - 1], T[q])
        e("ds_write_b64 v5, %s offset:%d" % (vp(R[q]), E1B + q * PE))
    e("s_waitcnt lgkmcnt(0)")
    e("s_barrier")
    k.stamp(3)
    for j in range(16):
        e("ds_read_b64 %s, v6 offset:%d" % (vp(X[j]), E1B + j * 64))
    e("s_waitcnt lgkmcnt(0)")
    R = fft16(k, X, T, SW, False)
    k.vmwait("tw2")
    for q in range(16):
        if q:
            k.cmul(R[q], R[q], TW2[q - 1], T[q])
        e("ds_write_b64 v8, %s offset:%d" % (vp(R[q]), E2B + q * 80))
    e("s_waitcnt lgkmcnt(0)")
    e("s_barrier")
    k.stamp(4)
    for j in range(8):
        e("ds_read_b128 %s, v7 offset:%d" % (vq(X[2 * j]), E2B + (j // 4) * 80 + (j % 4) * 16))
    e("s_waitcnt lgkmcnt(0)")
    k.fft8(X[0:8], T[0:8], 24, False)
    k.fft8(X[8:16], T[8:16], 24, False)
    k.vmwait("w")
    for i in range(16):
        w = X[i % 8]
        tt = X[8 + i % 8]
        e("v_lshlrev_b32 v%d, 16, v%d" % (w, WV + i))
        e("v_and_b32 v%d, 0xffff0000, v%d" % (w + 1, WV + i))
        k.cmul_s(w, w, 26)
        k.cmul(T[i], T[i], w, tt)
    k.fft8(T[0:8], X[0:8], 24, True)
    k.fft8(T[8:16], X[8:16], 24, True)
    for j in range(8):
        e("ds_write_b128 v7, %s offset:%d" % (vq(X[2 * j]), E2B + (j // 4) * 80 + (j % 4) * 16))
    e("s_waitcnt lgkmcnt(0)")
    e("s_barrier")
    k.stamp(5)
    for q in range(16):
        e("ds_read_b64 %s, v8 offset:%d" % (vp(X[q]), E2B + q * 80))
    e("s_waitcnt lgkmcnt(0)")
    for q in range(1, 16):
        k.cmul(X[q], X[q], TW2[q - 1], T[q], conj=True)
    R = fft16(k, X, T, SW, True)
    for j in range(16):
        e("ds_write_b64 v6, %s offset:%d" % (vp(R[j]), E1B + j * 64))
    e("s_waitcnt lgkmcnt(0)")
    e("s_barrier")
    k.stamp(6)
    for q in range(16):
        e("ds_read_b64 %s, v5 offset:%d" % (vp(X[q]), E1B + q * PE))
    e("s_waitcnt lgkmcnt(0)")
    for q in range(1, 16):
        k.cmul(X[q], X[q], TW1[q - 1], T[q], conj=True)
    R = fft16(k, X, T, SW, True)
    e("s_lshl_b32 s28, s2, 14")
    for j in range(16):
        e("buffer_store_dwordx2 %s, v5, s[12:15], s28 offen offset:%d sc1" % (vp(R[j]), (j * 1024) % 4096))
        if j % 4 == 3 and j < 15:
            e("s_add_u32 s28, s28, 4096")
    k.stamp_flush(7)
    k.label("K2_end")
    k.rt_end(1)
    e("s_endpgm")
    k.label("K2_helper")
    e("s_sub_u32 s4, s2, %d" % K2_MAIN)
    e("s_lshl_b32 s4, s4, 1")
    e("s_add_u32 s4, s4, s3")
    e("s_cmp_ge_u32 s4, 960")
    e("s_cbranch_scc1 K2_end")
    e("s_cmp_ge_u32 s4, 480")
    e("s_cbranch_scc1 K2_helper2")
    wprep_variant(k, 1)
    k.label("K2_helper2")
    e("s_sub_u32 s4, s4, 480")
    wprep_variant(k, 2)
    return k, 152


def gen_k3():
    k = K()
    kernel_header(k, "k3_kernel")
    k.rt_begin()
    e = k.e
    e("s_load_dwordx2 s[4:5], s[0:1], 0")
    e("s_load_dwordx2 s[6:7], s[0:1], 80")
    e("v_lshrrev_b32 v2, 6, v0")
    e("v_and_b32 v1, 63, v0")
    e("s_nop 0")
    e("v_readfirstlane_b32 s3, v2")
    e("s_waitcnt lgkmcnt(0)")
    k.stamp(0)
    e("s_cmp_ge_u32 s2, 256")
    e("s_cbranch_scc1 K3_end")
    k.srd(12, 4, H_BYTES)
    k.srd(16, 6, X1_BYTES, WS_X1)
    k.srd_table(20, "twr", 9 * 512 + 7 * 64)
    e("s_mov_b32 s36, 4096")
    X = [10 + 2 * i for i in range(10)]
    T = [30 + 2 * i for i in range(10)]
    TW1 = [50 + 2 * i for i in range(9)]
    TW2 = [68 + 2 * i for i in range(7)]
    TMP = [82 + 2 * i for i in range(8)]
    XR = [100 + 2 * i for i in range(10)]
    E320 = 120
    e("v_lshrrev_b32 v3, 3, v0")
    e("v_and_b32 v4, 7, v0")
    e("s_lshl_b32 s37, s2, 6")
    e("v_and_b32 v8, 3, v0")
    e("v_lshrrev_b32 v9, 2, v0")
    e("v_lshlrev_b32 v7, 14, v9")
    e("v_lshl_add_u32 v7, v8, 4, v7")
    e("s_mov_b32 s38, s37")
    for i in range(4):
        e("buffer_load_dwordx4 %s, v7, s[16:19], s38 offen" % vq(X[2 * i]))
        e("s_add_u32 s38, s38, 0x%x" % (80 * 16384))
    e("v_cmp_gt_u32 vcc, 4, v0")
    e("s_cmp_lg_u32 s3, 0")
    e("s_cbranch_scc1 K3_no320")
    e("s_and_saveexec_b64 s[34:35], vcc")
    e("buffer_load_dwordx4 %s, v7, s[16:19], s38 offen" % vq(E320))
    e("s_mov_b64 exec, s[34:35]")
    k.label("K3_no320")
    e("v_lshlrev_b32 v5, 3, v4")
    for n1 in range(1, 8):
        e("buffer_load_dwordx2 %s, v5, s[20:23], s36 offen offset:%d" % (vp(TW2[n1 - 1]), 512 + (n1 - 1) * 64))
    e("s_cmp_ge_u32 s3, 4")
    e("s_cbranch_scc1 K3_pre_done")
    e("s_lshl_b32 s38, s2, 3")
    e("s_lshl_b32 s39, s3, 1")
    e("s_add_u32 s39, s38, s39")
    e("s_mul_i32 s38, s39, 1280")
    e("v_lshlrev_b32 v5, 1, v1")
    for j in range(10):
        e("buffer_load_ushort v%d, v5, s[12:15], s38 offen offset:%d" % (XR[j], j * 128))
        e("buffer_load_ushort v%d, v5, s[12:15], s38 offen offset:%d" % (XR[j] + 1, 1280 + j * 128))
    e("v_lshlrev_b32 v5, 3, v1")
    for q1 in range(1, 10):
        e("buffer_load_dwordx2 %s, v5, s[20:23], 0 offen offset:%d" % (vp(TW1[q1 - 1]), (q1 - 1) * 512 if q1 < 9 else 0) if q1 < 9 else
          "buffer_load_dwordx2 %s, v5, s[20:23], s36 offen" % vp(TW1[q1 - 1]))
    k.label("K3_pre_done")
    k.srd(44, 6, H_BYTES, WS_H)
    k.srd(48, 6, H_BYTES, WS_LN2F)
    k.sconst2(24, R2)
    C5 = k.consts5(26)
    sC = ln_consts(k, 52)
    e("v_mul_u32_u24 v5, %d, v8" % P3)
    e("v_sub_u32 v6, 400, v9")
    e("v_lshl_add_u32 v6, v6, 3, v5")
    e("v_lshl_add_u32 v5, v9, 3, v5")
    e("v_add_u32 v7, %d, v6" % (3 * 640))
    e("v_cndmask_b32 v7, v7, v5, vcc")
    e("s_cmp_ge_u32 s3, 4")
    e("s_cbranch_scc1 K3_w4")
    e("s_waitcnt vmcnt(36)")
    e("s_branch K3_wj")
    k.label("K3_w4")
    e("s_waitcnt vmcnt(7)")
    k.label("K3_wj")
    k.stamp(1)
    for i in range(4):
        a_, b_ = X[2 * i], X[2 * i + 1]
        if i == 0:
            e("v_cndmask_b32 v%d, v%d, 0, vcc" % (a_ + 1, a_ + 1))
            e("v_cndmask_b32 v%d, v%d, 0, vcc" % (b_ + 1, b_ + 1))
        e("v_pk_add_f32 %s, %s, %s op_sel:[0,1] op_sel_hi:[1,0] neg_lo:[0,1]" % (vp(T[2 * i]), vp(a_), vp(b_)))
        e("v_pk_add_f32 %s, %s, %s op_sel:[0,1] op_sel_hi:[1,0] neg_hi:[1,0]" % (vp(T[2 * i + 1]), vp(a_), vp(b_)))
        if i == 0:
            e("ds_write_b64 v7, %s" % vp(T[1]))
        else:
            e("ds_write_b64 v6, %s offset:%d" % (vp(T[2 * i + 1]), (3 - i) * 640))
        e("ds_write_b64 v5, %s offset:%d" % (vp(T[2 * i]), i * 640))
    e("s_cmp_lg_u32 s3, 0")
    e("s_cbranch_scc1 K3_no320b")
    e("s_and_saveexec_b64 s[34:35], vcc")
    e("v_mov_b32 v%d, v%d" % (E320 + 1, E320 + 2))
    e("ds_write_b64 v5, %s offset:%d" % (vp(E320), 320 * 8))
    e("s_mov_b64 exec, s[34:35]")
    k.label("K3_no320b")
    X8 = X[:8]
    T8 = T[:8]
    e("v_mul_u32_u24 v6, 205, v3")
    e("v_lshrrev_b32 v6, 11, v6")
    e("v_mul_u32_u24 v7, 10, v6")
    e("v_sub_u32 v7, v3, v7")
    e("v_mul_u32_u24 v8, 10, v4")
    e("v_add_u32 v7, v7, v8")
    e("v_lshlrev_b32 v7, 3, v7")
    e("v_mul_u32_u24 v6, %d, v6" % P3)
    e("v_add_u32 v7, v7, v6")
    e("v_mul_u32_u24 v5, %d, v3" % P1)
    e("v_lshl_add_u32 v6, v4, 6, v5")
    e("v_lshl_add_u32 v5, v4, 3, v5")
    e("s_waitcnt lgkmcnt(0)")
    e("s_barrier")
    k.stamp(2)
    for q3 in range(8):
        e("ds_read_b64 %s, v7 offset:%d" % (vp(X8[q3]), q3 * 640))
    e("s_waitcnt lgkmcnt(0)")
    k.fft8(X8, T8, 24, True)
    e("s_cmp_ge_u32 s3, 4")
    e("s_cbranch_scc1 K3_w4b")
    e("s_waitcnt vmcnt(29)")
    e("s_branch K3_wjb")
    k.label("K3_w4b")
    e("s_waitcnt vmcnt(0)")
    k.label("K3_wjb")
    for n1 in range(1, 8):
        k.cmul(T8[n1], T8[n1], TW2[n1 - 1], X8[n1], conj=True)
    for j in range(4):
        e("ds_write_b128 v6, %s offset:%d" % (vq(T8[2 * j]), A2BASE + j * 16))
    e("s_waitcnt lgkmcnt(0)")
    e("s_barrier")
    k.stamp(3)
    for q2 in range(8):
        e("ds_read_b64 %s, v5 offset:%d" % (vp(X8[q2]), A2BASE + q2 * 64))
    e("s_waitcnt lgkmcnt(0)")
    k.fft8(X8, T8, 24, True)
    for j in range(8):
        e("ds_write_b64 v5, %s offset:%d" % (vp(T8[j]), j * 64))
    e("s_waitcnt lgkmcnt(0)")
    e("s_barrier")
    k.stamp(4)
    e("s_cmp_ge_u32 s3, 4")
    e("s_cbranch_scc1 K3_end")
    e("s_mul_i32 s40, s3, %d" % (10 * P1))
    e("v_lshlrev_b32 v5, 3, v1")
    e("v_add_u32 v5, s40, v5")
    for q1 in range(10):
        e("ds_read_b64 %s, v5 offset:%d" % (vp(X[q1]), q1 * P1))
    e("s_waitcnt vmcnt(0) lgkmcnt(0)")
    for q1 in range(1, 10):
        k.cmul(X[q1], X[q1], TW1[q1 - 1], T[q1], conj=True)
    R = k.fft10(X, T, C5, True)
    U = TMP[7]
    e("v_lshlrev_b32 v5, 2, v1")
    e("s_lshr_b32 s40, s39, 1")
    e("s_mul_i32 s40, s40, 2560")
    for j in range(10):
        y = R[j]
        h = XR[j]
        e("v_cvt_pk_bf16_f32 v%d, v%d, v%d" % (U, y, y + 1))
        e("v_lshlrev_b32 v%d, 16, v%d" % (h, h))
        e("v_lshlrev_b32 v%d, 16, v%d" % (h + 1, h + 1))
        e("v_lshlrev_b32 v%d, 16, v%d" % (y, U))
        e("v_and_b32 v%d, 0xffff0000, v%d" % (y + 1, U))
        e("v_pk_add_f32 %s, %s, %s" % (vp(h), vp(h), vp(y)))
        e("v_cvt_pk_bf16_f32 v%d, v%d, v%d" % (y, h, h + 1))
        e("v_lshlrev_b32 v%d, 16, v%d" % (h, y))
        e("v_and_b32 v%d, 0xffff0000, v%d" % (h + 1, y))
        e("buffer_store_dword v%d, v5, s[44:47], s40 offen offset:%d sc1" % (y, j * 256))
    layernorm_pk(k, XR, TMP, sC)
    e("v_lshrrev_b32 v6, 4, v1")
    e("v_lshlrev_b32 v6, 10, v6")
    e("v_lshrrev_b32 v7, 3, v1")
    e("v_and_b32 v7, 1, v7")
    e("v_lshl_add_u32 v6, v7, 9, v6")
    e("v_and_b32 v7, 7, v1")
    e("v_lshl_add_u32 v6, v7, 1, v6")
    e("s_lshr_b32 s40, s39, 5")
    e("s_mul_i32 s40, s40, 40960")
    e("s_and_b32 s41, s39, 31")
    e("s_lshl_b32 s41, s41, 4")
    e("s_add_u32 s40, s40, s41")
    for j in range(10):
        o = XR[j]
        e("buffer_store_short v%d, v6, s[48:51], s40 offen" % o)
        e("buffer_store_short_d16_hi v%d, v6, s[48:51], s40 offen offset:16" % o)
        if j < 9:
            e("s_add_u32 s40, s40, 4096")
    k.stamp_flush(5)
    k.label("K3_end")
    k.rt_end(2)
    e("s_endpgm")
    return k, 136


K4_LDS = 3 * 40960


def epi_pair_relu2(k, a0, a1, bias, t0, t1, p, dst):
    e = k.e
    e("v_cvt_pk_bf16_f32 v%d, v%d, v%d" % (p, a0, a1))
    e("v_lshlrev_b32 v%d, 16, v%d" % (a0, p))
    e("v_and_b32 v%d, 0xffff0000, v%d" % (a1, p))
    e("v_lshlrev_b32 v%d, 16, v%d" % (t0, bias))
    e("v_and_b32 v%d, 0xffff0000, v%d" % (t1, bias))
    e("v_pk_add_f32 %s, %s, %s" % (vp(a0), vp(a0), vp(t0)))
    e("v_cvt_pk_bf16_f32 v%d, v%d, v%d" % (p, a0, a1))
    e("v_lshlrev_b32 v%d, 16, v%d" % (a0, p))
    e("v_and_b32 v%d, 0xffff0000, v%d" % (a1, p))
    e("v_max_f32 v%d, 0, v%d" % (a0, a0))
    e("v_max_f32 v%d, 0, v%d" % (a1, a1))
    e("v_pk_mul_f32 %s, %s, %s" % (vp(a0), vp(a0), vp(a0)))
    e("v_cvt_pk_bf16_f32 v%d, v%d, v%d" % (dst, a0, a1))


def gen_k4():
    k = K()
    kernel_header(k, "k4_kernel")
    k.rt_begin()
    e = k.e
    e("s_load_dwordx2 s[4:5], s[0:1], 40")
    e("s_load_dwordx2 s[6:7], s[0:1], 80")
    e("v_lshrrev_b32 v2, 6, v0")
    e("v_and_b32 v1, 63, v0")
    e("s_nop 0")
    e("v_readfirstlane_b32 s3, v2")
    e("s_waitcnt lgkmcnt(0)")
    k.stamp(0)
    e("s_cmp_ge_u32 s2, 256")
    e("s_cbranch_scc1 K4_end")
    k.srd(12, 6, H_BYTES, WS_LN2F)
    k.srd(16, 6, WF_BYTES, WS_W1F)
    e("s_and_b32 s8, s2, 3")
    e("s_lshl_b32 s8, s8, 2")
    e("s_lshr_b32 s9, s2, 3")
    e("s_and_b32 s10, s9, 3")
    e("s_add_u32 s8, s8, s10")
    e("s_lshr_b32 s9, s9, 2")
    e("s_lshr_b32 s10, s2, 2")
    e("s_and_b32 s10, s10, 1")
    e("s_lshl_b32 s10, s10, 3")
    e("s_add_u32 s9, s9, s10")
    e("s_lshl_b32 s8, s8, 2")
    e("s_add_u32 s8, s8, s3")
    e("s_mul_i32 s10, s8, 40960")
    e("s_mul_i32 s11, s9, %d" % (3 * 40960))
    e("s_lshl_b32 s28, s3, 11")
    e("v_lshlrev_b32 v2, 4, v1")
    ACC = 16
    BF = 64
    AB = [224, 236]

    def chunk_ops(c):
        ops = []
        for i in range(3):
            def f(i=i):
                e("s_add_u32 s29, s28, %d" % (i * 40960 + c * 8192))
                e("s_add_u32 s30, s29, s11")
                e("s_mov_b32 m0, s29")
                e("s_nop 0")
                k.vm("buffer_load_dwordx4 v2, s[16:19], s30 offen lds", "c%d" % c)
            ops.append(f)
            ops.append(lambda: k.vm("buffer_load_dwordx4 v2, s[16:19], s30 offen offset:1024 lds", "c%d" % c))
        for s in range(8):
            def g(s=s):
                if s % 4 == 0:
                    e("s_add_u32 s31, s10, %d" % ((8 * c + s) * 1024))
                k.vm("buffer_load_dwordx4 %s, v2, s[12:15], s31 offen offset:%d" % (vq(BF + (8 * c + s) * 4), (s % 4) * 1024), "c%d" % c)
            ops.append(g)
        return ops

    def bias_ops():
        ops = []
        def h0():
            e("v_lshrrev_b32 v5, 5, v1")
            e("v_lshlrev_b32 v5, 3, v5")
            e("s_mul_i32 s32, s9, 192")
        for i in range(3):
            for g in range(4):
                def f(i=i, g=g):
                    if i == 0 and g == 0:
                        h0()
                    k.vm("buffer_load_dwordx2 %s, v5, s[24:27], s32 offen offset:%d" % (vp(BF + (i * 4 + g) * 2), i * 64 + g * 16), "bias")
                ops.append(f)
        return ops

    def areads(slab, buf):
        for i in range(3):
            e("ds_read_b128 %s, v%d offset:%d" % (vq(AB[buf] + 4 * i), 2 + i, slab * 1024))

    for c in range(2):
        for op in chunk_ops(c):
            op()
    k.srd(20, 6, HF_BYTES, WS_HF)
    k.srd(24, 4, 3072)
    e("v_add_u32 v3, 40960, v2")
    e("v_add_u32 v4, 81920, v2")
    for i in range(48):
        e("v_mov_b32 v%d, 0" % (ACC + i))
    for c in range(5):
        k.vmwait("c%d" % c)
        e("s_barrier")
        if c in (0, 1, 2, 4):
            k.stamp(1 + (0, 1, 2, 0, 3)[c])
        pend = chunk_ops(c + 2) if c + 2 < 5 else (bias_ops() if c == 3 else [])
        areads(8 * c, 0)
        for s in range(8):
            slab = 8 * c + s
            buf = s % 2
            if s < 7:
                areads(slab + 1, 1 - buf)
                e("s_waitcnt lgkmcnt(3)")
            else:
                e("s_waitcnt lgkmcnt(0)")
            for i in range(3):
                e("v_mfma_f32_32x32x16_bf16 v[%d:%d], %s, %s, v[%d:%d]" % (
                    ACC + 16 * i, ACC + 16 * i + 15, vq(AB[buf] + 4 * i), vq(BF + slab * 4), ACC + 16 * i, ACC + 16 * i + 15))
                if i < 2 and pend:
                    pend.pop(0)()
        while pend:
            pend.pop(0)()
    e("v_lshrrev_b32 v9, 4, v1")
    e("v_and_b32 v9, 1, v9")
    e("v_mul_u32_u24 v9, 49152, v9")
    e("v_and_b32 v10, 15, v1")
    e("v_lshl_add_u32 v9, v10, 4, v9")
    e("v_lshrrev_b32 v10, 5, v1")
    e("v_lshl_add_u32 v9, v10, 8, v9")
    e("s_mul_i32 s32, s8, 96")
    e("s_mul_i32 s33, s9, 3")
    e("s_add_u32 s32, s32, s33")
    e("s_lshl_b32 s32, s32, 10")
    k.vmwait("bias")
    k.stamp(5)
    k.nop(16)
    PK = 100
    for i in range(3):
        for gp in range(2):
            for g in (2 * gp, 2 * gp + 1):
                for hp in range(2):
                    a = ACC + 16 * i + 4 * g + 2 * hp
                    epi_pair_relu2(k, a, a + 1, BF + (i * 4 + g) * 2 + hp, 6, 7, 8, PK + i * 8 + g * 2 + hp)
            e("buffer_store_dwordx4 %s, v9, s[20:23], s32 offen offset:%d sc1" % (vq(PK + i * 8 + gp * 4), i * 1024 + gp * 512))
    k.stamp_flush(6)
    k.label("K4_end")
    k.rt_end(3)
    e("s_endpgm")
    return k, 248


K5_SLOTS = 6
K5_PD = 4
K5_LDS = K5_SLOTS * 20480


def gen_k5():
    k = K()
    kernel_header(k, "k5_kernel")
    k.rt_begin()
    e = k.e
    e("s_load_dwordx4 s[4:7], s[0:1], 56")
    e("s_load_dwordx2 s[8:9], s[0:1], 80")
    e("v_lshrrev_b32 v2, 6, v0")
    e("v_and_b32 v1, 63, v0")
    e("s_nop 0")
    e("v_readfirstlane_b32 s3, v2")
    e("s_waitcnt lgkmcnt(0)")
    k.stamp(0)
    e("s_cmp_ge_u32 s2, 256")
    e("s_cbranch_scc1 K5_end")
    k.srd(12, 8, HF_BYTES, WS_HF)
    k.srd(16, 8, WF_BYTES, WS_W2F)
    k.srd(36, 8, H_BYTES, WS_H)
    e("s_and_b32 s8, s2, 3")
    e("s_lshl_b32 s8, s8, 3")
    e("s_lshr_b32 s9, s2, 3")
    e("s_and_b32 s10, s9, 7")
    e("s_add_u32 s8, s8, s10")
    e("s_lshr_b32 s9, s9, 3")
    e("s_lshr_b32 s10, s2, 2")
    e("s_and_b32 s10, s10, 1")
    e("s_lshl_b32 s10, s10, 2")
    e("s_add_u32 s9, s9, s10")
    e("s_lshl_b32 s8, s8, 2")
    e("s_add_u32 s8, s8, s3")
    e("s_mul_i32 s10, s8, %d" % (48 * 1024))
    e("s_mul_i32 s11, s9, %d" % (240 * 1024))
    e("s_mul_i32 s28, s3, 5120")
    e("v_lshlrev_b32 v2, 4, v1")
    ACC = 16
    AB = [36, 56]
    BF = 76
    EP = 176
    NCH = 12
    PD = K5_PD

    def chunk_ops(c):
        slot = c % K5_SLOTS
        ops = []
        def d0():
            e("s_add_u32 s29, s28, %d" % (slot * 20480))
            e("s_add_u32 s30, s28, %d" % (c * 20480))
            e("s_add_u32 s30, s30, s11")
            e("s_mov_b32 m0, s29")
            e("s_nop 0")
            k.vm("buffer_load_dwordx4 v2, s[16:19], s30 offen lds", "c%d" % c)
        ops.append(d0)
        for i in range(1, 4):
            ops.append(lambda i=i: k.vm("buffer_load_dwordx4 v2, s[16:19], s30 offen offset:%d lds" % (i * 1024), "c%d" % c))
        def d4():
            e("s_add_u32 s29, s29, 4096")
            e("s_add_u32 s30, s30, 4096")
            e("s_mov_b32 m0, s29")
            e("s_nop 0")
            k.vm("buffer_load_dwordx4 v2, s[16:19], s30 offen lds", "c%d" % c)
        ops.append(d4)
        for s_ in range(4):
            def g(s_=s_):
                if s_ == 0:
                    e("s_add_u32 s31, s10, %d" % (4 * c * 1024))
                k.vm("buffer_load_dwordx4 %s, v2, s[12:15], s31 offen offset:%d" % (vq(BF + slot * 16 + s_ * 4), s_ * 1024), "c%d" % c)
            ops.append(g)
        return ops

    def ep_ops():
        ops = []
        def pre():
            e("v_and_b32 v5, 15, v1")
            e("s_lshl_b32 s32, s8, 4")
            e("v_add_u32 v5, s32, v5")
            e("v_lshrrev_b32 v6, 4, v1")
            e("v_lshrrev_b32 v7, 1, v5")
            e("v_mul_u32_u24 v7, 2560, v7")
            e("v_lshl_add_u32 v7, v6, 4, v7")
            e("v_lshlrev_b32 v8, 3, v6")
            e("v_mul_u32_u24 v9, 1280, v5")
            e("v_add_u32 v9, v9, v8")
            e("v_and_b32 v10, 1, v5")
            e("v_lshlrev_b32 v10, 4, v10")
            e("s_mul_i32 s33, s9, 320")
            e("s_mul_i32 s34, s9, 160")
        for i in range(5):
            def f(i=i):
                if i == 0:
                    pre()
                k.vm("buffer_load_dwordx4 %s, v7, s[36:39], s33 offen offset:%d" % (vq(EP + 4 * i), i * 64), "ep")
            ops.append(f)
            ops.append(lambda i=i: k.vm("buffer_load_dwordx2 %s, v8, s[24:27], s34 offen offset:%d" % (vp(EP + 20 + 2 * i), i * 32), "ep"))
        return ops

    def areads(c, s, buf):
        slot = c % K5_SLOTS
        vb, off = (2, slot * 20480) if slot < 3 else (3, (slot - 3) * 20480)
        for i in range(5):
            e("ds_read_b128 %s, v%d offset:%d" % (vq(AB[buf] + 4 * i), vb, off + s * 5120 + i * 1024))

    for c in range(PD):
        for op in chunk_ops(c):
            op()
    k.srd(20, 6, H_BYTES)
    k.srd(24, 4, 1280)
    e("v_add_u32 v3, 61440, v2")
    for i in range(20):
        e("v_mov_b32 v%d, 0" % (ACC + i))
    for c in range(NCH):
        k.vmwait("c%d" % c)
        e("s_barrier")
        if c in (0, 1, 2, 4):
            k.stamp(1 + (0, 1, 2, 0, 3)[c])
        pend = chunk_ops(c + PD) if c + PD < NCH else (ep_ops() if c == NCH - PD else [])
        st = c % K5_SLOTS
        areads(c, 0, 0)
        for s in range(4):
            buf = s % 2
            if s < 3:
                areads(c, s + 1, 1 - buf)
                e("s_waitcnt lgkmcnt(5)")
            else:
                e("s_waitcnt lgkmcnt(0)")
            for i in range(5):
                e("v_mfma_f32_16x16x32_bf16 v[%d:%d], %s, %s, v[%d:%d]" % (
                    ACC + 4 * i, ACC + 4 * i + 3, vq(AB[buf] + 4 * i), vq(BF + st * 16 + s * 4), ACC + 4 * i, ACC + 4 * i + 3))
                if i in (1, 3) and pend:
                    pend.pop(0)()
            if pend:
                pend.pop(0)()
        while pend:
            pend.pop(0)()
    k.vmwait("ep")
    k.stamp(5)
    k.nop(10)
    t0, t1, p = 12, 13, 14
    for i in range(5):
        for hp in range(2):
            a0 = ACC + 4 * i + 2 * hp
            a1 = a0 + 1
            bias = EP + 20 + 2 * i + hp
            h0 = EP + 4 * i + 2 * hp
            h1 = h0 + 1
            e("v_cvt_pk_bf16_f32 v%d, v%d, v%d" % (p, a0, a1))
            e("v_lshlrev_b32 v%d, 16, v%d" % (a0, p))
            e("v_and_b32 v%d, 0xffff0000, v%d" % (a1, p))
            e("v_lshlrev_b32 v%d, 16, v%d" % (t0, bias))
            e("v_and_b32 v%d, 0xffff0000, v%d" % (t1, bias))
            e("v_pk_add_f32 %s, %s, %s" % (vp(a0), vp(a0), vp(t0)))
            e("v_cvt_pk_bf16_f32 v%d, v%d, v%d" % (p, a0, a1))
            e("v_lshlrev_b32 v%d, 16, v%d" % (a0, p))
            e("v_and_b32 v%d, 0xffff0000, v%d" % (a1, p))
            e("v_lshrrev_b32 v%d, v10, v%d" % (t0, h0))
            e("v_lshrrev_b32 v%d, v10, v%d" % (t1, h1))
            e("v_lshlrev_b32 v%d, 16, v%d" % (t0, t0))
            e("v_lshlrev_b32 v%d, 16, v%d" % (t1, t1))
            e("v_pk_add_f32 %s, %s, %s" % (vp(a0), vp(a0), vp(t0)))
            e("v_cvt_pk_bf16_f32 v%d, v%d, v%d" % (bias, a0, a1))
        e("buffer_store_dwordx2 %s, v9, s[20:23], s34 offen offset:%d" % (vp(EP + 20 + 2 * i), i * 32))
    k.stamp_flush(6)
    k.label("K5_end")
    k.rt_end(4)
    e("s_endpgm")
    return k, 208


def table(name, n):
    out = [".p2align 8", ".type %s,@object" % name, "%s:" % name]
    for i in range(n):
        a = -2.0 * math.pi * i / n
        out.append("    .long 0x%08x, 0x%08x" % (f2u(math.cos(a)), f2u(math.sin(a))))
    out.append(".size %s, %d" % (name, n * 8))
    return out


def table_list(name, ents):
    out = [".p2align 8", ".type %s,@object" % name, "%s:" % name]
    for n, i in ents:
        a = -2.0 * math.pi * (i % n) / n
        out.append("    .long 0x%08x, 0x%08x" % (f2u(math.cos(a)), f2u(math.sin(a))))
    out.append(".size %s, %d" % (name, len(ents) * 8))
    return out


def main():
    ref = open(REF).read().splitlines()
    head = [l for l in ref if l.startswith(";") and "@launch" not in l and "Override" not in l and "grid=ceil" not in l]
    k1, v1 = gen_k1()
    k2, v2 = gen_k2()
    k3, v3 = gen_k3()
    k4, v4 = gen_k4()
    k5, v5 = gen_k5()
    L = list(head)
    L.append("; @launch kernel=k1_kernel grid=(%d,1,1) block=(320,1,1) lds=%d" % (K1_MAIN + K1_HELP, 2 * A2BASE))
    L.append("; @launch kernel=k2_kernel grid=(%d,1,1) block=(128,1,1) lds=%d" % (K2_MAIN + K2_HELP, K2_LDS))
    L.append("; @launch kernel=k3_kernel grid=(256,1,1) block=(320,1,1) lds=%d" % (2 * A2BASE))
    L.append("; @launch kernel=k4_kernel grid=(256,1,1) block=(256,1,1) lds=%d" % K4_LDS)
    L.append("; @launch kernel=k5_kernel grid=(256,1,1) block=(256,1,1) lds=%d" % K5_LDS)
    L.append('.amdgcn_target "amdgcn-amd-amdhsa--gfx950"')
    L.append(".text")
    for kk in (k1, k2, k3, k4, k5):
        L += kk.L
    L += table_list("twr", [(640, n0 * q) for q in range(1, 10) for n0 in range(64)] + [(640, 10 * n1 * q) for q in range(1, 8) for n1 in range(8)])
    L += table_list("twk2", [(2048, t * q) for q in range(1, 16) for t in range(128)] + [(2048, 16 * s1 * q) for q in range(1, 16) for s1 in range(8)])
    L.append('.section .rodata,"a"')
    L.append(".p2align 6")
    for nm, v in (("k1_kernel", v1), ("k2_kernel", v2), ("k3_kernel", v3), ("k4_kernel", v4), ("k5_kernel", v5)):
        L.append(kernel_desc(nm, v))
    open(OUT, "w").write("\n".join(L) + "\n")
    print("wrote", OUT, len(L), "lines")


if __name__ == "__main__":
    main()
```
